```python
import torch

def _softmax(x, axis=-1):
    return torch.softmax(x, dim=axis)
def _gelu(x):
    return torch.nn.functional.gelu(x, approximate="tanh")
def _silu(x):
    return torch.nn.functional.silu(x)
def _sigmoid(x):
    return torch.sigmoid(x)
def _layernorm(x, axis=-1, eps=1e-5):
    m = x.mean(dim=axis, keepdim=True)
    v = x.var(dim=axis, keepdim=True, unbiased=False)
    return (x - m) / torch.sqrt(v + eps)
def _scatter_add(tgt, idx, src, axis=0):
    return tgt.clone().index_add_(axis, idx, src)
def _segment_sum(src, seg, n):
    out = torch.zeros((n,) + src.shape[1:], dtype=src.dtype)
    return out.index_add_(0, seg, src)
def _pad(x, pw):
    flat = tuple(v for pair in reversed(pw) for v in pair)
    return torch.nn.functional.pad(x, flat)

kernel_name = 'concat_heads__mha_block_cached__gqa_block_cached__near_ridge'

def setup_inputs():

    _w = (lambda a: (lambda t: t.to(torch.bfloat16) if t.is_floating_point() else t)(torch.as_tensor(a)))
    def _A_setup():
        B, Sq, D = 16, 128, 512
        H, Sk, Dh = 32, 512, 128
        return {
            "x": _w((lambda *s: torch.randn(*s, dtype=torch.bfloat16) * 0.8)(B, Sq, D)),
            "k_cache": _w((lambda *s: torch.randn(*s, dtype=torch.bfloat16) * 0.8)(B, H, Sk, Dh)),
            "v_cache": _w((lambda *s: torch.randn(*s, dtype=torch.bfloat16) * 0.05)(B, H, Sk, Dh)),
            "wq": _w((lambda *s: torch.randn(*s, dtype=torch.bfloat16) * 0.8)(D, H * Dh) * (D ** -0.5)),
            "wo": _w((lambda *s: torch.randn(*s, dtype=torch.bfloat16) * 0.05)(H * Dh, D) * ((H * Dh) ** -0.5)),
        }
    _A_in = _A_setup()

    def _B_setup():
        B, Sq, D = 16, 128, 512
        Hq, Hkv, Sk, Dh = 32, 32, 512, 128
        assert Hq % Hkv == 0, (Hq, Hkv)
        return {
            "x": _w((lambda *s: torch.randn(*s, dtype=torch.bfloat16) * 0.8)(B, Sq, D)),
            "k_cache": _w((lambda *s: torch.randn(*s, dtype=torch.bfloat16) * 0.8)(B, Hkv, Sk, Dh)),
            "v_cache": _w((lambda *s: torch.randn(*s, dtype=torch.bfloat16) * 0.05)(B, Hkv, Sk, Dh)),
            "wq": _w((lambda *s: torch.randn(*s, dtype=torch.bfloat16) * 0.8)(D, Hq * Dh) * (D ** -0.5)),
            "wo": _w((lambda *s: torch.randn(*s, dtype=torch.bfloat16) * 0.05)(Hq * Dh, D) * ((Hq * Dh) ** -0.5)),
        }
    _B_in = _B_setup()

    return {
        "A_x": _A_in["x"],
        "A_k_cache": _A_in["k_cache"],
        "A_v_cache": _A_in["v_cache"],
        "A_wq": _A_in["wq"],
        "A_wo": _A_in["wo"],
        "B_x": _B_in["x"],
        "B_k_cache": _B_in["k_cache"],
        "B_v_cache": _B_in["v_cache"],
        "B_wq": _B_in["wq"],
        "B_wo": _B_in["wo"],
    }

def reference(A_x, A_k_cache, A_v_cache, A_wq, A_wo, B_x, B_k_cache, B_v_cache, B_wq, B_wo):
    def _A_ref(x, k_cache, v_cache, wq, wo):
        B, Sq, D = x.shape
        H, Dh = 32, 128
        q = (lambda x, *d: x.permute(*d))((x @ wq).reshape(B, Sq, H, Dh), 0, 2, 1, 3)
        scores = torch.einsum("bhqd,bhkd->bhqk", q, k_cache) * (Dh ** -0.5)
        p = _softmax(scores, axis=-1)
        o = torch.einsum("bhqk,bhkd->bhqd", p, v_cache)
        return (lambda x, *d: x.permute(*d))(o, 0, 2, 1, 3).reshape(B, Sq, H * Dh) @ wo

    def _B_ref(x, k_cache, v_cache, wq, wo):
        B, Sq, D = x.shape
        Hq, Dh = 32, 128
        Hkv = k_cache.shape[1]
        rep = Hq // Hkv
        q = (lambda x, *d: x.permute(*d))((x @ wq).reshape(B, Sq, Hq, Dh), 0, 2, 1, 3)
        k = (lambda x, n, axis: torch.repeat_interleave(x, n, dim=axis))(k_cache, rep, axis=1)
        v = (lambda x, n, axis: torch.repeat_interleave(x, n, dim=axis))(v_cache, rep, axis=1)
        scores = torch.einsum("bhqd,bhkd->bhqk", q, k) * (Dh ** -0.5)
        p = _softmax(scores, axis=-1)
        o = torch.einsum("bhqk,bhkd->bhqd", p, v)
        return (lambda x, *d: x.permute(*d))(o, 0, 2, 1, 3).reshape(B, Sq, Hq * Dh) @ wo

    a = _A_ref(A_x, A_k_cache, A_v_cache, A_wq, A_wo)
    b = _B_ref(B_x, B_k_cache, B_v_cache, B_wq, B_wo)
    return torch.concatenate([a, b], axis=-1)
```

```python
import sys, os
DEBUG = os.environ.get("DEBUG", "")

NAME = "concat_heads__mha_block_cached__gqa_block_cached__near_ridge"
OUT = "cdna_kernels/%s.s" % NAME

HEADER = """; Kernarg layout for this problem (104 bytes, ptrs only, base s[0:1]):
; @launch kernel=attn_kernel grid=(1024,1,1) block=(256,1,1) lds=65536
; @launch kernel=oproj_kernel grid=(256,1,1) block=(256,1,1) lds=65536
.amdgcn_target "amdgcn-amd-amdhsa--gfx950"
.text
"""


class Asm:
    def __init__(self):
        self.lines = []

    def __call__(self, s):
        self.lines.append("    " + s)

    def label(self, s):
        self.lines.append(s + ":")

    def comment(self, s):
        self.lines.append("    ; " + s)

    def text(self):
        return "\n".join(self.lines) + "\n"


def vr(a, n=1):
    return "v%d" % a if n == 1 else "v[%d:%d]" % (a, a + n - 1)


def sr(a, n=1):
    return "s%d" % a if n == 1 else "s[%d:%d]" % (a, a + n - 1)


import struct


def f32bits(x):
    return struct.unpack("<I", struct.pack("<f", x))[0]


SCALE_LOG2E = (128 ** -0.5) * 1.4426950408889634


def gen_attn(a):
    SLOT = 16384
    NSLOT = 4
    NT = 24
    S_KA = 0
    S_WG = 2
    sK, sV, sW, sX, sO = 8, 12, 16, 20, 24
    sWave = 28
    sM0base = 29
    sC = 30
    sTmp = 31
    sH, sB, sBlk = 32, 33, 34
    sOff = 35
    vKoff = [2, 3, 4, 5]
    vVoff, vWoff = 6, 7
    vKrd = list(range(8, 16))
    vTrd = list(range(16, 20))
    vXoff = 20
    vM, vL, vAlpha = 21, 22, 23
    vT = list(range(24, 32))
    NB = 6
    vF = [32 + 4 * i for i in range(NB)]
    vACC = 56
    vX = 120
    vS = 120
    vPB = 184
    vQB = 216

    a.label("attn_kernel")
    a("s_cmp_ge_u32 s2, 1024")
    a("s_cbranch_scc1 attn_done")
    a("s_and_b32 s3, s2, 7")
    a("s_lshr_b32 s4, s2, 3")
    a("s_and_b32 s5, s4, 3")
    a("s_lshl_b32 s5, s5, 3")
    a("s_add_u32 %s, s3, s5" % sr(sH))
    a("s_lshr_b32 s5, s4, 2")
    a("s_and_b32 %s, s5, 15" % sr(sB))
    a("s_lshr_b32 %s, s4, 6" % sr(sBlk))
    a("s_mul_i32 s3, %s, 40" % sr(sBlk))
    a("s_add_u32 s4, s0, s3")
    a("s_addc_u32 s5, s1, 0")
    a("s_load_dwordx8 s[40:47], s[4:5], 0")
    a("s_load_dwordx2 s[48:49], s[0:1], 96")
    a("v_lshrrev_b32 v1, 6, v0")
    a("v_and_b32 v0, 63, v0")
    a("v_readfirstlane_b32 %s, v1" % sr(sWave))
    a("s_mov_b32 %s, 0x%08x" % (sr(sC), f32bits(SCALE_LOG2E)))
    a("s_lshl_b32 %s, %s, 12" % (sr(sM0base), sr(sWave)))
    rr, p = vT[0], vT[1]
    a("v_lshrrev_b32 %s, 4, v0" % vr(rr))
    a("v_and_b32 %s, 15, v0" % vr(p))
    a("s_lshl_b32 s3, %s, 4" % sr(sWave))
    a("v_add_u32 %s, s3, %s" % (vr(vT[2]), vr(rr)))
    for j in range(4):
        a("v_add_u32 %s, %d, %s" % (vr(vT[3]), 4 * j, vr(rr)))
        a("v_xor_b32 %s, %s, %s" % (vr(vT[3]), vr(vT[3]), vr(p)))
        a("v_lshlrev_b32 %s, 4, %s" % (vr(vT[3]), vr(vT[3])))
        a("v_lshl_add_u32 %s, %s, 8, %s" % (vr(vKoff[j]), vr(vT[2]), vr(vT[3])))
    a("v_lshlrev_b32 %s, 2, %s" % (vr(vT[3]), vr(rr)))
    a("v_xor_b32 %s, %s, %s" % (vr(vT[3]), vr(vT[3]), vr(p)))
    a("v_lshlrev_b32 %s, 4, %s" % (vr(vT[3]), vr(vT[3])))
    a("v_lshl_add_u32 %s, %s, 8, %s" % (vr(vVoff), vr(vT[2]), vr(vT[3])))
    a("v_lshl_add_u32 %s, %s, 13, %s" % (vr(vWoff), vr(vT[2]), vr(vT[3])))
    r, hh, pr = vT[0], vT[1], vT[2]
    a("v_and_b32 %s, 31, v0" % vr(r))
    a("v_lshrrev_b32 %s, 5, v0" % vr(hh))
    a("v_and_b32 %s, 0x13, %s" % (vr(pr), vr(r)))
    a("v_and_b32 %s, 4, %s" % (vr(vT[3]), vr(r)))
    a("v_lshl_or_b32 %s, %s, 1, %s" % (vr(pr), vr(vT[3]), vr(pr)))
    a("v_and_b32 %s, 8, %s" % (vr(vT[3]), vr(r)))
    a("v_lshrrev_b32 %s, 1, %s" % (vr(vT[3]), vr(vT[3])))
    a("v_or_b32 %s, %s, %s" % (vr(pr), vr(pr), vr(vT[3])))
    a("v_and_b32 %s, 15, %s" % (vr(vT[4]), vr(pr)))
    for t in range(8):
        a("v_add_u32 %s, %d, %s" % (vr(vT[3]), 2 * t, vr(hh)))
        a("v_xor_b32 %s, %s, %s" % (vr(vT[3]), vr(vT[3]), vr(vT[4])))
        a("v_lshlrev_b32 %s, 4, %s" % (vr(vT[3]), vr(vT[3])))
        a("v_lshl_add_u32 %s, %s, 8, %s" % (vr(vKrd[t]), vr(pr), vr(vT[3])))
    a("s_lshl_b32 s3, %s, 5" % sr(sWave))
    a("v_add_u32 %s, s3, %s" % (vr(vT[3]), vr(r)))
    a("v_lshlrev_b32 %s, 10, %s" % (vr(vT[3]), vr(vT[3])))
    a("v_lshl_add_u32 %s, %s, 4, %s" % (vr(vXoff), vr(hh), vr(vT[3])))
    r4, c4, mh, sw = vT[0], vT[2], vT[3], vT[4]
    a("v_bfe_u32 %s, v0, 2, 2" % vr(r4))
    a("v_and_b32 %s, 3, v0" % vr(c4))
    a("v_bfe_u32 %s, v0, 4, 1" % vr(mh))
    a("v_and_b32 %s, 1, %s" % (vr(sw), vr(c4)))
    a("v_lshlrev_b32 %s, 1, %s" % (vr(sw), vr(sw)))
    a("v_lshrrev_b32 %s, 1, %s" % (vr(vT[5]), vr(c4)))
    a("v_or_b32 %s, %s, %s" % (vr(sw), vr(sw), vr(vT[5])))
    a("v_lshl_add_u32 %s, %s, 3, %s" % (vr(vT[5]), vr(hh), vr(r4)))
    a("v_lshlrev_b32 %s, 8, %s" % (vr(vT[5]), vr(vT[5])))
    a("v_lshrrev_b32 %s, 1, %s" % (vr(vT[6]), vr(sw)))
    a("v_lshl_add_u32 %s, %s, 1, %s" % (vr(vT[6]), vr(mh), vr(vT[6])))
    a("v_lshl_add_u32 %s, %s, 4, %s" % (vr(vT[5]), vr(vT[6]), vr(vT[5])))
    a("v_and_b32 %s, 1, %s" % (vr(vT[6]), vr(sw)))
    a("v_lshl_add_u32 %s, %s, 3, %s" % (vr(vT[5]), vr(vT[6]), vr(vT[5])))
    for dt in range(4):
        a("v_xor_b32 %s, %d, %s" % (vr(vT[6]), dt, vr(r4)))
        a("v_lshl_add_u32 %s, %s, 6, %s" % (vr(vTrd[dt]), vr(vT[6]), vr(vT[5])))
    a("s_waitcnt lgkmcnt(0)")
    a("s_lshl_b32 s3, %s, 5" % sr(sB))
    a("s_add_u32 s3, s3, %s" % sr(sH))
    a("s_lshr_b32 s4, s3, 15")
    a("s_lshl_b32 s3, s3, 17")
    for (srd, ptr) in ((sK, 42), (sV, 44)):
        a("s_add_u32 %s, s%d, s3" % (sr(srd), ptr))
        a("s_addc_u32 %s, s%d, s4" % (sr(srd + 1), ptr + 1))
        a("s_mov_b32 %s, 131072" % sr(srd + 2))
        a("s_mov_b32 %s, 0x20000" % sr(srd + 3))
    a("s_lshl_b32 s3, %s, 8" % sr(sH))
    a("s_add_u32 %s, s46, s3" % sr(sW))
    a("s_addc_u32 %s, s47, 0" % sr(sW + 1))
    a("s_sub_u32 %s, 4194304, s3" % sr(sW + 2))
    a("s_mov_b32 %s, 0x20000" % sr(sW + 3))
    a("s_lshl_b32 s3, %s, 17" % sr(sB))
    a("s_add_u32 %s, s40, s3" % sr(sX))
    a("s_addc_u32 %s, s41, 0" % sr(sX + 1))
    a("s_mov_b32 %s, 131072" % sr(sX + 2))
    a("s_mov_b32 %s, 0x20000" % sr(sX + 3))
    a("s_lshl_b32 s3, %s, 6" % sr(sBlk))
    a("s_lshl_b32 s4, %s, 2" % sr(sB))
    a("s_add_u32 s3, s3, s4")
    a("s_add_u32 s3, s3, %s" % sr(sWave))
    a("s_lshl_b32 s3, s3, 8")
    a("s_lshl_b32 s4, %s, 3" % sr(sH))
    a("s_add_u32 s3, s3, s4")
    a("s_lshl_b32 s3, s3, 10")
    a("s_add_u32 %s, s48, s3" % sr(sO))
    a("s_addc_u32 %s, s49, 0" % sr(sO + 1))
    a("s_mov_b32 %s, 8192" % sr(sO + 2))
    a("s_mov_b32 %s, 0x20000" % sr(sO + 3))

    def tile_kind(i):
        if i < 8:
            return ("W", i)
        k = i - 8
        kt, r = k // 4, k % 4
        return ("K", 2 * kt + r) if r < 2 else ("V", 2 * kt + r - 2)

    def issue_dma(i):
        kind, idx = tile_kind(i)
        slot = (i % NSLOT) * SLOT
        if kind == "W":
            for j in range(4):
                a("s_add_u32 m0, %s, %d" % (sr(sM0base), slot + 1024 * j))
                a("s_mov_b32 %s, %d" % (sr(sOff), idx * 64 * 8192 + j * 32768))
                a("buffer_load_dwordx4 %s, %s, %s offen lds" % (vr(vWoff), sr(sW, 4), sr(sOff)))
        else:
            a("s_add_u32 m0, %s, %d" % (sr(sM0base), slot))
            a("s_mov_b32 %s, %d" % (sr(sOff), idx * 16384))
            for j in range(4):
                if kind == "K":
                    a("buffer_load_dwordx4 %s, %s, %s offen offset:%d lds" % (vr(vKoff[j]), sr(sK, 4), sr(sOff), 1024 * j))
                else:
                    a("buffer_load_dwordx4 %s, %s, %s offen offset:%d lds" % (vr(vVoff), sr(sV, 4), sr(sOff), 1024 * j))

    issue_dma(0)
    for T in range(32):
        a("buffer_load_dwordx4 %s, %s, %s, 0 offen offset:%d" % (vr(vX + 4 * T, 4), vr(vXoff), sr(sX, 4), 32 * T))
    issue_dma(1)
    issue_dma(2)

    def run_items(items):
        n = len(items)
        per = len(items[0][0])

        def issue(j):
            f = vF[j % NB]
            for k, rd in enumerate(items[j][0]):
                a(rd(f, k))
        for j in range(min(NB, n)):
            issue(j)
        for j in range(n):
            issued = min(n, j + NB)
            a("s_waitcnt lgkmcnt(%d)" % ((issued - j - 1) * per))
            a(items[j][1](vF[j % NB]))
            if j + NB < n:
                issue(j + NB)

    def softmax(kt):
        a.comment("softmax kt=%d" % kt)
        a("s_nop 15")
        ch = vT[0:4]
        for c in range(4):
            a("v_max3_f32 %s, %s, %s, %s" % (vr(ch[c]), vr(vS + 16 * c), vr(vS + 16 * c + 1), vr(vS + 16 * c + 2)))
        for k in range(3, 15, 2):
            for c in range(4):
                a("v_max3_f32 %s, %s, %s, %s" % (vr(ch[c]), vr(ch[c]), vr(vS + 16 * c + k), vr(vS + 16 * c + k + 1)))
        for c in range(4):
            a("v_max_f32 %s, %s, %s" % (vr(ch[c]), vr(ch[c]), vr(vS + 16 * c + 15)))
        a("v_max3_f32 %s, %s, %s, %s" % (vr(ch[0]), vr(ch[0]), vr(ch[1]), vr(ch[2])))
        a("v_max_f32 %s, %s, %s" % (vr(ch[0]), vr(ch[0]), vr(ch[3])))
        a("v_mov_b32 %s, %s" % (vr(ch[1]), vr(ch[0])))
        a("s_nop 1")
        a("v_permlane32_swap_b32 %s, %s" % (vr(ch[0]), vr(ch[1])))
        a("s_nop 1")
        if kt == 0:
            a("v_max_f32 %s, %s, %s" % (vr(vM), vr(ch[0]), vr(ch[1])))
        else:
            a("v_max3_f32 %s, %s, %s, %s" % (vr(ch[2]), vr(ch[0]), vr(ch[1]), vr(vM)))
            a("v_sub_f32 %s, %s, %s" % (vr(ch[3]), vr(vM), vr(ch[2])))
            a("v_mul_f32 %s, %s, %s" % (vr(ch[3]), sr(sC), vr(ch[3])))
            a("v_exp_f32 %s, %s" % (vr(vAlpha), vr(ch[3])))
            a("v_mov_b32 %s, %s" % (vr(vM), vr(ch[2])))
        mc = vT[4]
        a("v_mul_f32 %s, %s, %s" % (vr(mc), sr(sC), vr(vM)))
        for i in range(64):
            a("v_fma_f32 %s, %s, %s, -%s" % (vr(vS + i), vr(vS + i), sr(sC), vr(mc)))
        for i in range(64):
            a("v_exp_f32 %s, %s" % (vr(vS + i), vr(vS + i)))
        if kt > 0:
            for i in range(64):
                a("v_mul_f32 %s, %s, %s" % (vr(vACC + i), vr(vAlpha), vr(vACC + i)))
        for c in range(4):
            a("v_add_f32 %s, %s, %s" % (vr(ch[c]), vr(vS + 16 * c), vr(vS + 16 * c + 1)))
        for k in range(2, 16):
            for c in range(4):
                a("v_add_f32 %s, %s, %s" % (vr(ch[c]), vr(ch[c]), vr(vS + 16 * c + k)))
        for i in range(32):
            a("v_cvt_pk_bf16_f32 %s, %s, %s" % (vr(vPB + i), vr(vS + 2 * i), vr(vS + 2 * i + 1)))
        a("v_add_f32 %s, %s, %s" % (vr(ch[0]), vr(ch[0]), vr(ch[1])))
        a("v_add_f32 %s, %s, %s" % (vr(ch[2]), vr(ch[2]), vr(ch[3])))
        a("v_add_f32 %s, %s, %s" % (vr(ch[0]), vr(ch[0]), vr(ch[2])))
        if kt == 0:
            a("v_mov_b32 %s, %s" % (vr(vL), vr(ch[0])))
        else:
            a("v_fma_f32 %s, %s, %s, %s" % (vr(vL), vr(vL), vr(vAlpha), vr(ch[0])))

    for i in range(NT):
        kind, idx = tile_kind(i)
        slot = (i % NSLOT) * SLOT
        rem = min(NT - 1, i + 2) - i
        a.comment("---- step %d: %s%d" % (i, kind, idx))
        a("s_waitcnt vmcnt(%d)" % (4 * rem))
        a("s_barrier")
        if i + 3 < NT:
            issue_dma(i + 3)
        items = []
        if kind == "W":
            for ks in range(4):
                for dt in range(4):
                    gk = 4 * idx + ks

                    def rd(f, k, dt=dt, ks=ks):
                        return "ds_read_b64_tr_b16 %s, %s offset:%d" % (vr(f + 2 * k, 2), vr(vTrd[dt]), slot + (16 * ks + 4 * k) * 256)

                    def mf(f, dt=dt, gk=gk):
                        c = "0" if gk == 0 else vr(vACC + 16 * dt, 16)
                        return "v_mfma_f32_32x32x16_bf16 %s, %s, %s, %s" % (vr(vACC + 16 * dt, 16), vr(f, 4), vr(vX + 4 * gk, 4), c)
                    items.append(([rd, rd], mf))
            run_items(items)
            if idx == 7:
                a.comment("pack Q")
                a("s_nop 15")
                for T in range(8):
                    dt, t = T // 2, T % 2
                    for jj in range(4):
                        s0 = vACC + 16 * dt + 8 * t + 2 * jj
                        a("v_cvt_pk_bf16_f32 %s, %s, %s" % (vr(vQB + 4 * T + jj), vr(s0), vr(s0 + 1)))
                a("s_nop 1")
                if DEBUG == "q":
                    a("v_lshlrev_b32 %s, 4, v0" % vr(vXoff))
                    for T in range(8):
                        a("buffer_store_dwordx4 %s, %s, %s, 0 offen offset:%d" % (vr(vQB + 4 * T, 4), vr(vXoff), sr(sO, 4), 1024 * T))
                    a("s_waitcnt vmcnt(0)")
                    a("s_endpgm")
        elif kind == "K":
            half = idx % 2
            for sub in range(2):
                for T in range(8):
                    st = vS + 16 * (2 * half + sub)

                    def rd(f, k, T=T, sub=sub):
                        return "ds_read_b128 %s, %s offset:%d" % (vr(f, 4), vr(vKrd[T]), slot + sub * 8192)

                    def mf(f, T=T, st=st):
                        c = "0" if T == 0 else vr(st, 16)
                        return "v_mfma_f32_32x32x16_bf16 %s, %s, %s, %s" % (vr(st, 16), vr(f, 4), vr(vQB + 4 * T, 4), c)
                    items.append(([rd], mf))
            run_items(items)
            if half == 1:
                softmax(idx // 2)
                a("s_nop 1")
        else:
            half = idx % 2
            for sub in range(2):
                for tp in range(2):
                    kst = 4 * half + 2 * sub + tp
                    for dt in range(4):
                        def rd(f, k, dt=dt, sub=sub, tp=tp):
                            return "ds_read_b64_tr_b16 %s, %s offset:%d" % (vr(f + 2 * k, 2), vr(vTrd[dt]), slot + (32 * sub + 16 * tp + 4 * k) * 256)

                        def mf(f, dt=dt, kst=kst, idx=idx):
                            c = "0" if (idx == 0 and kst == 0) else vr(vACC + 16 * dt, 16)
                            return "v_mfma_f32_32x32x16_bf16 %s, %s, %s, %s" % (vr(vACC + 16 * dt, 16), vr(f, 4), vr(vPB + 4 * kst, 4), c)
                        items.append(([rd, rd], mf))
            run_items(items)
    a("v_mov_b32 %s, %s" % (vr(vT[1]), vr(vL)))
    a("s_nop 1")
    a("v_permlane32_swap_b32 %s, %s" % (vr(vL), vr(vT[1])))
    a("s_nop 1")
    a("v_add_f32 %s, %s, %s" % (vr(vL), vr(vL), vr(vT[1])))
    a("v_rcp_f32 %s, %s" % (vr(vL), vr(vL)))
    a("v_lshlrev_b32 %s, 4, v0" % vr(vXoff))
    a("s_nop 15")
    for i in range(64):
        a("v_mul_f32 %s, %s, %s" % (vr(vACC + i), vr(vL), vr(vACC + i)))
    for i in range(32):
        a("v_cvt_pk_bf16_f32 %s, %s, %s" % (vr(vS + i), vr(vACC + 2 * i), vr(vACC + 2 * i + 1)))
    a("s_mov_b32 %s, 4096" % sr(sOff))
    for T in range(8):
        a("buffer_store_dwordx4 %s, %s, %s, %s offen offset:%d" % (vr(vS + 4 * T, 4), vr(vXoff), sr(sO, 4), "0" if T < 4 else sr(sOff), 1024 * (T % 4)))
    a.label("attn_done")
    a("s_endpgm")


def gen_oproj(a):
    SLOT = 16384
    NSLOT = 4
    NT = 32
    sWo, sO, sOut = 8, 12, 16
    sWave, sM0base, sOff, sBlk, sB, sN = 28, 29, 30, 31, 32, 33
    vDoff = 2
    vRd = [3, 4]
    vBoff = 5
    vT = list(range(8, 16))
    NB = 6
    vF = [16 + 4 * i for i in range(NB)]
    vACC = 40
    vB = 72

    a.label("oproj_kernel")
    a("s_cmp_ge_u32 s2, 256")
    a("s_cbranch_scc1 oproj_done")
    a("s_and_b32 s3, s2, 7")
    a("s_lshr_b32 s4, s2, 3")
    a("s_lshr_b32 %s, s3, 2" % sr(sBlk))
    a("s_and_b32 s5, s3, 3")
    a("s_lshl_b32 s5, s5, 2")
    a("s_lshr_b32 s6, s4, 3")
    a("s_add_u32 %s, s5, s6" % sr(sB))
    a("s_and_b32 %s, s4, 7" % sr(sN))
    a("s_mul_i32 s3, %s, 40" % sr(sBlk))
    a("s_add_u32 s4, s0, s3")
    a("s_addc_u32 s5, s1, 0")
    a("s_load_dwordx2 s[40:41], s[4:5], 32")
    a("s_load_dwordx2 s[42:43], s[0:1], 80")
    a("s_load_dwordx2 s[44:45], s[0:1], 96")
    a("v_lshrrev_b32 v1, 6, v0")
    a("v_and_b32 v0, 63, v0")
    a("v_readfirstlane_b32 %s, v1" % sr(sWave))
    a("s_nop 3")
    a("s_lshl_b32 %s, %s, 12" % (sr(sM0base), sr(sWave)))
    a("v_lshrrev_b32 %s, 3, v0" % vr(vT[0]))
    a("s_lshl_b32 s3, %s, 5" % sr(sWave))
    a("v_add_u32 %s, s3, %s" % (vr(vT[0]), vr(vT[0])))
    a("v_and_b32 %s, 7, v0" % vr(vT[1]))
    a("v_bfe_u32 %s, v0, 4, 1" % vr(vT[2]))
    a("v_lshlrev_b32 %s, 2, %s" % (vr(vT[2]), vr(vT[2])))
    a("v_xor_b32 %s, %s, %s" % (vr(vT[1]), vr(vT[1]), vr(vT[2])))
    a("v_lshlrev_b32 %s, 4, %s" % (vr(vT[1]), vr(vT[1])))
    a("v_lshl_add_u32 %s, %s, 10, %s" % (vr(vDoff), vr(vT[0]), vr(vT[1])))
    hh, r4, c4, mh, sw = vT[0], vT[1], vT[2], vT[3], vT[4]
    a("v_lshrrev_b32 %s, 5, v0" % vr(hh))
    a("v_bfe_u32 %s, v0, 2, 2" % vr(r4))
    a("v_and_b32 %s, 3, v0" % vr(c4))
    a("v_bfe_u32 %s, v0, 4, 1" % vr(mh))
    a("v_and_b32 %s, 1, %s" % (vr(sw), vr(c4)))
    a("v_lshlrev_b32 %s, 1, %s" % (vr(sw), vr(sw)))
    a("v_lshrrev_b32 %s, 1, %s" % (vr(vT[5]), vr(c4)))
    a("v_or_b32 %s, %s, %s" % (vr(sw), vr(sw), vr(vT[5])))
    a("v_lshl_add_u32 %s, %s, 3, %s" % (vr(vT[5]), vr(hh), vr(r4)))
    a("v_lshlrev_b32 %s, 7, %s" % (vr(vT[5]), vr(vT[5])))
    a("v_and_b32 %s, 1, %s" % (vr(vT[6]), vr(sw)))
    a("v_lshl_add_u32 %s, %s, 3, %s" % (vr(vT[5]), vr(vT[6]), vr(vT[5])))
    a("v_lshrrev_b32 %s, 1, %s" % (vr(vT[6]), vr(sw)))
    a("v_lshl_add_u32 %s, %s, 1, %s" % (vr(vT[6]), vr(mh), vr(vT[6])))
    a("v_lshrrev_b32 %s, 1, %s" % (vr(vT[7]), vr(r4)))
    a("v_lshlrev_b32 %s, 2, %s" % (vr(vT[7]), vr(vT[7])))
    a("v_xor_b32 %s, %s, %s" % (vr(vT[6]), vr(vT[6]), vr(vT[7])))
    a("v_lshl_add_u32 %s, %s, 4, %s" % (vr(vRd[0]), vr(vT[6]), vr(vT[5])))
    a("v_xor_b32 %s, 64, %s" % (vr(vRd[1]), vr(vRd[0])))
    a("v_lshlrev_b32 %s, 4, v0" % vr(vBoff))
    a("s_waitcnt lgkmcnt(0)")
    a("s_lshl_b32 s3, %s, 7" % sr(sN))
    a("s_add_u32 %s, s40, s3" % sr(sWo))
    a("s_addc_u32 %s, s41, 0" % sr(sWo + 1))
    a("s_sub_u32 %s, 4194304, s3" % sr(sWo + 2))
    a("s_mov_b32 %s, 0x20000" % sr(sWo + 3))
    a("s_lshl_b32 s3, %s, 6" % sr(sBlk))
    a("s_lshl_b32 s4, %s, 2" % sr(sB))
    a("s_add_u32 s3, s3, s4")
    a("s_add_u32 s3, s3, %s" % sr(sWave))
    a("s_lshl_b32 s3, s3, 18")
    a("s_add_u32 %s, s44, s3" % sr(sO))
    a("s_addc_u32 %s, s45, 0" % sr(sO + 1))
    a("s_mov_b32 %s, 262144" % sr(sO + 2))
    a("s_mov_b32 %s, 0x20000" % sr(sO + 3))
    a("s_lshl_b32 s3, %s, 7" % sr(sB))
    a("s_lshl_b32 s4, %s, 5" % sr(sWave))
    a("s_add_u32 s3, s3, s4")
    a("s_lshl_b32 s3, s3, 11")
    a("s_lshl_b32 s4, %s, 10" % sr(sBlk))
    a("s_add_u32 s3, s3, s4")
    a("s_lshl_b32 s4, %s, 7" % sr(sN))
    a("s_add_u32 s3, s3, s4")
    a("s_add_u32 %s, s42, s3" % sr(sOut))
    a("s_addc_u32 %s, s43, 0" % sr(sOut + 1))
    a("s_sub_u32 %s, 4194304, s3" % sr(sOut + 2))
    a("s_mov_b32 %s, 0x20000" % sr(sOut + 3))

    def issue_dma(i):
        slot = (i % NSLOT) * SLOT
        for j in range(4):
            a("s_add_u32 m0, %s, %d" % (sr(sM0base), slot + 1024 * j))
            a("s_mov_b32 %s, %d" % (sr(sOff), i * 128 * 1024 + j * 8192))
            a("buffer_load_dwordx4 %s, %s, %s offen lds" % (vr(vDoff), sr(sWo, 4), sr(sOff)))

    def issue_b(i):
        base = vB + 32 * (i % 3)
        a("s_mov_b32 %s, %d" % (sr(sOff), i * 8192))
        for ks in range(8):
            a("buffer_load_dwordx4 %s, %s, %s, %s offen offset:%d" % (vr(base + 4 * ks, 4), vr(vBoff), sr(sO, 4), sr(sOff), 1024 * (ks % 4)))
            if ks == 3:
                a("s_mov_b32 %s, %d" % (sr(sOff), i * 8192 + 4096))

    issue_dma(0)
    issue_b(0)
    issue_dma(1)
    issue_b(1)
    issue_dma(2)

    def run_items(items):
        n = len(items)
        per = len(items[0][0])

        def issue(j):
            f = vF[j % NB]
            for k, rd in enumerate(items[j][0]):
                a(rd(f, k))
        for j in range(min(NB, n)):
            issue(j)
        for j in range(n):
            issued = min(n, j + NB)
            a("s_waitcnt lgkmcnt(%d)" % ((issued - j - 1) * per))
            a(items[j][1](vF[j % NB]))
            if j + NB < n:
                issue(j + NB)

    for i in range(NT):
        slot = (i % NSLOT) * SLOT
        a.comment("---- step %d" % i)
        n = 0
        if i + 1 < NT:
            n += 12
        if i + 2 < NT:
            n += 4
        a("s_waitcnt vmcnt(%d)" % n)
        a("s_barrier")
        if i + 2 < NT:
            issue_b(i + 2)
        if i + 3 < NT:
            issue_dma(i + 3)
        items = []
        for ks in range(8):
            for nt in range(2):
                def rd(f, k, nt=nt, ks=ks):
                    return "ds_read_b64_tr_b16 %s, %s offset:%d" % (vr(f + 2 * k, 2), vr(vRd[nt]), slot + (16 * ks + 4 * k) * 128)

                def mf(f, nt=nt, ks=ks, i=i):
                    c = "0" if (i == 0 and ks == 0) else vr(vACC + 16 * nt, 16)
                    return "v_mfma_f32_32x32x16_bf16 %s, %s, %s, %s" % (vr(vACC + 16 * nt, 16), vr(f, 4), vr(vB + 32 * (i % 3) + 4 * ks, 4), c)
                items.append(([rd, rd], mf))
        run_items(items)
    a("v_and_b32 %s, 31, v0" % vr(vT[0]))
    a("v_lshrrev_b32 %s, 5, v0" % vr(vT[1]))
    a("v_lshlrev_b32 %s, 11, %s" % (vr(vT[0]), vr(vT[0])))
    a("v_lshl_add_u32 %s, %s, 4, %s" % (vr(vT[0]), vr(vT[1]), vr(vT[0])))
    a("s_nop 15")
    for i in range(16):
        a("v_cvt_pk_bf16_f32 %s, %s, %s" % (vr(vB + i), vr(vACC + 2 * i), vr(vACC + 2 * i + 1)))
    for T in range(4):
        a("buffer_store_dwordx4 %s, %s, %s, 0 offen offset:%d" % (vr(vB + 4 * T, 4), vr(vT[0]), sr(sOut, 4), 32 * T))
    a.label("oproj_done")
    a("s_endpgm")


def kd(name, vgpr, sgpr):
    return """.amdhsa_kernel %s
  .amdhsa_next_free_vgpr %d
  .amdhsa_next_free_sgpr %d
  .amdhsa_accum_offset %d
  .amdhsa_group_segment_fixed_size 0
  .amdhsa_kernarg_size 104
  .amdhsa_user_sgpr_count 2
  .amdhsa_user_sgpr_kernarg_segment_ptr 1
  .amdhsa_system_sgpr_workgroup_id_x 1
.end_amdhsa_kernel
""" % (name, vgpr, sgpr, (vgpr + 3) // 4 * 4)


def main():
    out = HEADER
    for name, fn in (("attn_kernel", gen_attn), ("oproj_kernel", gen_oproj)):
        a = Asm()
        fn(a)
        out += ".globl %s\n.p2align 8\n.type %s,@function\n" % (name, name)
        out += a.text()
    out += '.section .rodata,"a"\n.p2align 6\n'
    out += kd("attn_kernel", 248, 64)
    out += ".p2align 6\n"
    out += kd("oproj_kernel", 168, 64)
    path = sys.argv[1] if len(sys.argv) > 1 else OUT
    open(path, "w").write(out)
    print("wrote", path, len(out))


if __name__ == "__main__":
    main()
```

```python
import sys, os
DEBUG = os.environ.get("DEBUG", "")
KVFLAG = os.environ.get("KVFLAG", " nt")
STFLAG = os.environ.get("STFLAG", " sc1")
WOFLAG = os.environ.get("WOFLAG", "")
FILTER = [x for x in os.environ.get("FILTER", "").split(",") if x]

NAME = "concat_heads__mha_block_cached__gqa_block_cached__near_ridge"
OUT = "cdna_kernels/%s.s" % NAME

HEADER = """; Kernarg layout for this problem (104 bytes, ptrs only, base s[0:1]):
; @launch kernel=attn_kernel grid=(1024,1,1) block=(256,1,1) lds=ATTN_LDS
; @launch kernel=oproj_kernel grid=(256,1,1) block=(256,1,1) lds=OPROJ_LDS
.amdgcn_target "amdgcn-amd-amdhsa--gfx950"
.text
"""


class Asm:
    def __init__(self):
        self.lines = []

    def __call__(self, s):
        for f in FILTER:
            if f == "dma" and s.endswith(" lds"):
                return
            if f == "mfma" and s.startswith("v_mfma"):
                return
            if f == "ldsrd" and s.startswith("ds_read"):
                return
            if f == "valu" and (s.startswith("v_exp") or s.startswith("v_fma") or s.startswith("v_add_f32") or s.startswith("v_mul_f32") or s.startswith("v_max") or s.startswith("v_cvt")):
                return
            if f == "bar" and s.startswith("s_barrier"):
                return
            if f == "wdma" and s.endswith(" offen lds"):
                return
            if f == "xld" and s.startswith("buffer_load_dwordx4 v[") and "s[20:23]" in s:
                return
            if f == "ost" and s.startswith("buffer_store"):
                return
            if f == "wld" and s.startswith("buffer_load_dwordx4 v[") and "s[8:11]" in s:
                return
            if f == "ldswr" and s.startswith("ds_write"):
                return
            if f == "bld" and s.startswith("buffer_load_dwordx4 v[") and "s[12:15]" in s:
                return
        self.lines.append("    " + s)

    def label(self, s):
        self.lines.append(s + ":")

    def comment(self, s):
        self.lines.append("    ; " + s)

    def text(self):
        return "\n".join(self.lines) + "\n"


def vr(a, n=1):
    return "v%d" % a if n == 1 else "v[%d:%d]" % (a, a + n - 1)


def sr(a, n=1):
    return "s%d" % a if n == 1 else "s[%d:%d]" % (a, a + n - 1)


import struct


def f32bits(x):
    return struct.unpack("<I", struct.pack("<f", x))[0]


SCALE_LOG2E = (128 ** -0.5) * 1.4426950408889634


def gen_attn(a):
    SLOT = 16384
    NSLOT = int(os.environ.get("NSLOT", "5"))
    NT = 24
    S_KA = 0
    S_WG = 2
    sK, sV, sW, sX, sO = 8, 12, 16, 20, 24
    sWave = 28
    sM0base = 29
    sC = 30
    sTmp = 31
    sH, sB, sBlk = 32, 33, 34
    sOff = 35
    vKoff = [2, 3, 4, 5]
    vVoff, vWoff = 6, 7
    vKrd = list(range(8, 16))
    vTrd = list(range(16, 20))
    vXoff = 20
    vM, vL, vAlpha = 21, 22, 23
    vT = list(range(24, 32))
    NB = 6
    vF = [32 + 4 * i for i in range(NB)]
    vACC = 56
    vX = 120
    vS = 120
    vPB = 184
    vQB = 216

    a.label("attn_kernel")
    a("s_cmp_ge_u32 s2, 1024")
    a("s_cbranch_scc1 attn_done")
    a("s_and_b32 s3, s2, 7")
    a("s_lshr_b32 s4, s2, 3")
    a("s_and_b32 s5, s4, 3")
    a("s_lshl_b32 s5, s5, 3")
    a("s_add_u32 %s, s3, s5" % sr(sH))
    a("s_lshr_b32 s5, s4, 2")
    a("s_and_b32 %s, s5, 15" % sr(sB))
    a("s_lshr_b32 %s, s4, 6" % sr(sBlk))
    a("s_mul_i32 s3, %s, 40" % sr(sBlk))
    a("s_add_u32 s4, s0, s3")
    a("s_addc_u32 s5, s1, 0")
    a("s_load_dwordx8 s[40:47], s[4:5], 0")
    a("s_load_dwordx2 s[48:49], s[0:1], 96")
    a("v_lshrrev_b32 v1, 6, v0")
    a("v_and_b32 v0, 63, v0")
    a("v_readfirstlane_b32 %s, v1" % sr(sWave))
    a("s_mov_b32 %s, 0x%08x" % (sr(sC), f32bits(SCALE_LOG2E)))
    a("s_lshl_b32 %s, %s, 12" % (sr(sM0base), sr(sWave)))
    rr, p = vT[0], vT[1]
    a("v_lshrrev_b32 %s, 4, v0" % vr(rr))
    a("v_and_b32 %s, 15, v0" % vr(p))
    a("s_lshl_b32 s3, %s, 4" % sr(sWave))
    a("v_add_u32 %s, s3, %s" % (vr(vT[2]), vr(rr)))
    for j in range(4):
        a("v_add_u32 %s, %d, %s" % (vr(vT[3]), 4 * j, vr(rr)))
        a("v_xor_b32 %s, %s, %s" % (vr(vT[3]), vr(vT[3]), vr(p)))
        a("v_lshlrev_b32 %s, 4, %s" % (vr(vT[3]), vr(vT[3])))
        a("v_lshl_add_u32 %s, %s, 8, %s" % (vr(vKoff[j]), vr(vT[2]), vr(vT[3])))
    a("v_lshlrev_b32 %s, 2, %s" % (vr(vT[3]), vr(rr)))
    a("v_xor_b32 %s, %s, %s" % (vr(vT[3]), vr(vT[3]), vr(p)))
    a("v_lshlrev_b32 %s, 4, %s" % (vr(vT[3]), vr(vT[3])))
    a("v_lshl_add_u32 %s, %s, 8, %s" % (vr(vVoff), vr(vT[2]), vr(vT[3])))
    a("v_lshl_add_u32 %s, %s, 13, %s" % (vr(vWoff), vr(vT[2]), vr(vT[3])))
    r, hh, pr = vT[0], vT[1], vT[2]
    a("v_and_b32 %s, 31, v0" % vr(r))
    a("v_lshrrev_b32 %s, 5, v0" % vr(hh))
    a("v_and_b32 %s, 0x13, %s" % (vr(pr), vr(r)))
    a("v_and_b32 %s, 4, %s" % (vr(vT[3]), vr(r)))
    a("v_lshl_or_b32 %s, %s, 1, %s" % (vr(pr), vr(vT[3]), vr(pr)))
    a("v_and_b32 %s, 8, %s" % (vr(vT[3]), vr(r)))
    a("v_lshrrev_b32 %s, 1, %s" % (vr(vT[3]), vr(vT[3])))
    a("v_or_b32 %s, %s, %s" % (vr(pr), vr(pr), vr(vT[3])))
    a("v_and_b32 %s, 15, %s" % (vr(vT[4]), vr(pr)))
    for t in range(8):
        a("v_add_u32 %s, %d, %s" % (vr(vT[3]), 2 * t, vr(hh)))
        a("v_xor_b32 %s, %s, %s" % (vr(vT[3]), vr(vT[3]), vr(vT[4])))
        a("v_lshlrev_b32 %s, 4, %s" % (vr(vT[3]), vr(vT[3])))
        a("v_lshl_add_u32 %s, %s, 8, %s" % (vr(vKrd[t]), vr(pr), vr(vT[3])))
    a("s_lshl_b32 s3, %s, 5" % sr(sWave))
    a("v_add_u32 %s, s3, %s" % (vr(vT[3]), vr(r)))
    a("v_lshlrev_b32 %s, 10, %s" % (vr(vT[3]), vr(vT[3])))
    a("v_lshl_add_u32 %s, %s, 4, %s" % (vr(vXoff), vr(hh), vr(vT[3])))
    r4, c4, mh, sw = vT[0], vT[2], vT[3], vT[4]
    a("v_bfe_u32 %s, v0, 2, 2" % vr(r4))
    a("v_and_b32 %s, 3, v0" % vr(c4))
    a("v_bfe_u32 %s, v0, 4, 1" % vr(mh))
    a("v_and_b32 %s, 1, %s" % (vr(sw), vr(c4)))
    a("v_lshlrev_b32 %s, 1, %s" % (vr(sw), vr(sw)))
    a("v_lshrrev_b32 %s, 1, %s" % (vr(vT[5]), vr(c4)))
    a("v_or_b32 %s, %s, %s" % (vr(sw), vr(sw), vr(vT[5])))
    a("v_lshl_add_u32 %s, %s, 3, %s" % (vr(vT[5]), vr(hh), vr(r4)))
    a("v_lshlrev_b32 %s, 8, %s" % (vr(vT[5]), vr(vT[5])))
    a("v_lshrrev_b32 %s, 1, %s" % (vr(vT[6]), vr(sw)))
    a("v_lshl_add_u32 %s, %s, 1, %s" % (vr(vT[6]), vr(mh), vr(vT[6])))
    a("v_lshl_add_u32 %s, %s, 4, %s" % (vr(vT[5]), vr(vT[6]), vr(vT[5])))
    a("v_and_b32 %s, 1, %s" % (vr(vT[6]), vr(sw)))
    a("v_lshl_add_u32 %s, %s, 3, %s" % (vr(vT[5]), vr(vT[6]), vr(vT[5])))
    for dt in range(4):
        a("v_xor_b32 %s, %d, %s" % (vr(vT[6]), dt, vr(r4)))
        a("v_lshl_add_u32 %s, %s, 6, %s" % (vr(vTrd[dt]), vr(vT[6]), vr(vT[5])))
    a("s_waitcnt lgkmcnt(0)")
    a("s_lshl_b32 s3, %s, 5" % sr(sB))
    a("s_add_u32 s3, s3, %s" % sr(sH))
    a("s_lshr_b32 s4, s3, 15")
    a("s_lshl_b32 s3, s3, 17")
    for (srd, ptr) in ((sK, 42), (sV, 44)):
        a("s_add_u32 %s, s%d, s3" % (sr(srd), ptr))
        a("s_addc_u32 %s, s%d, s4" % (sr(srd + 1), ptr + 1))
        a("s_mov_b32 %s, 131072" % sr(srd + 2))
        a("s_mov_b32 %s, 0x20000" % sr(srd + 3))
    a("s_lshl_b32 s3, %s, 8" % sr(sH))
    a("s_add_u32 %s, s46, s3" % sr(sW))
    a("s_addc_u32 %s, s47, 0" % sr(sW + 1))
    a("s_sub_u32 %s, 4194304, s3" % sr(sW + 2))
    a("s_mov_b32 %s, 0x20000" % sr(sW + 3))
    a("s_lshl_b32 s3, %s, 17" % sr(sB))
    a("s_add_u32 %s, s40, s3" % sr(sX))
    a("s_addc_u32 %s, s41, 0" % sr(sX + 1))
    a("s_mov_b32 %s, 131072" % sr(sX + 2))
    a("s_mov_b32 %s, 0x20000" % sr(sX + 3))
    a("s_lshl_b32 s3, %s, 6" % sr(sBlk))
    a("s_lshl_b32 s4, %s, 2" % sr(sB))
    a("s_add_u32 s3, s3, s4")
    a("s_add_u32 s3, s3, %s" % sr(sWave))
    a("s_lshl_b32 s3, s3, 8")
    a("s_lshl_b32 s4, %s, 3" % sr(sH))
    a("s_add_u32 s3, s3, s4")
    a("s_lshl_b32 s3, s3, 10")
    a("s_add_u32 %s, s48, s3" % sr(sO))
    a("s_addc_u32 %s, s49, 0" % sr(sO + 1))
    a("s_mov_b32 %s, 8192" % sr(sO + 2))
    a("s_mov_b32 %s, 0x20000" % sr(sO + 3))

    def tile_kind(i):
        if i < 8:
            return ("W", i)
        k = i - 8
        kt, r = k // 4, k % 4
        return ("K", 2 * kt + r) if r < 2 else ("V", 2 * kt + r - 2)

    IORD = [0, 1, 2, 3, 4, 8, 9, 5, 6, 7] + list(range(10, NT))
    if os.environ.get("IORD"):
        IORD = [int(x) for x in os.environ["IORD"].split(",")]
        IORD += [x for x in range(NT) if x not in IORD]
    slot_of = {}
    vm_log = []

    def issue_dma(i, slotno):
        kind, idx = tile_kind(i)
        slot_of[i] = slotno
        slot = slotno * SLOT
        if kind == "W":
            for j in range(4):
                a("s_add_u32 m0, %s, %d" % (sr(sM0base), slot + 1024 * j))
                a("s_mov_b32 %s, %d" % (sr(sOff), idx * 64 * 8192 + j * 32768))
                a("buffer_load_dwordx4 %s, %s, %s offen lds" % (vr(vWoff), sr(sW, 4), sr(sOff)))
                vm_log.append(i)
        else:
            a("s_add_u32 m0, %s, %d" % (sr(sM0base), slot))
            a("s_mov_b32 %s, %d" % (sr(sOff), idx * 16384))
            for j in range(4):
                if kind == "K":
                    a("buffer_load_dwordx4 %s, %s, %s offen offset:%d%s lds" % (vr(vKoff[j]), sr(sK, 4), sr(sOff), 1024 * j, KVFLAG))
                else:
                    a("buffer_load_dwordx4 %s, %s, %s offen offset:%d%s lds" % (vr(vVoff), sr(sV, 4), sr(sOff), 1024 * j, KVFLAG))
                vm_log.append(i)

    issue_dma(IORD[0], 0)
    for T in range(32):
        a("buffer_load_dwordx4 %s, %s, %s, 0 offen offset:%d" % (vr(vX + 4 * T, 4), vr(vXoff), sr(sX, 4), 32 * T))
        vm_log.append(0)
    for n in range(1, NSLOT):
        issue_dma(IORD[n], n)
    nissued = NSLOT

    def run_items(items):
        n = len(items)
        per = len(items[0][0])

        def issue(j):
            f = vF[j % NB]
            for k, rd in enumerate(items[j][0]):
                a(rd(f, k))
        for j in range(min(NB, n)):
            issue(j)
        for j in range(n):
            issued = min(n, j + NB)
            a("s_waitcnt lgkmcnt(%d)" % ((issued - j - 1) * per))
            a(items[j][1](vF[j % NB]))
            if j + NB < n:
                issue(j + NB)

    def softmax(kt):
        a.comment("softmax kt=%d" % kt)
        a("s_nop 15")
        ch = vT[0:4]
        for c in range(4):
            a("v_max3_f32 %s, %s, %s, %s" % (vr(ch[c]), vr(vS + 16 * c), vr(vS + 16 * c + 1), vr(vS + 16 * c + 2)))
        for k in range(3, 15, 2):
            for c in range(4):
                a("v_max3_f32 %s, %s, %s, %s" % (vr(ch[c]), vr(ch[c]), vr(vS + 16 * c + k), vr(vS + 16 * c + k + 1)))
        for c in range(4):
            a("v_max_f32 %s, %s, %s" % (vr(ch[c]), vr(ch[c]), vr(vS + 16 * c + 15)))
        a("v_max3_f32 %s, %s, %s, %s" % (vr(ch[0]), vr(ch[0]), vr(ch[1]), vr(ch[2])))
        a("v_max_f32 %s, %s, %s" % (vr(ch[0]), vr(ch[0]), vr(ch[3])))
        a("v_mov_b32 %s, %s" % (vr(ch[1]), vr(ch[0])))
        a("s_nop 1")
        a("v_permlane32_swap_b32 %s, %s" % (vr(ch[0]), vr(ch[1])))
        a("s_nop 1")
        if kt == 0:
            a("v_max_f32 %s, %s, %s" % (vr(vM), vr(ch[0]), vr(ch[1])))
        else:
            a("v_max3_f32 %s, %s, %s, %s" % (vr(ch[2]), vr(ch[0]), vr(ch[1]), vr(vM)))
            a("v_sub_f32 %s, %s, %s" % (vr(ch[3]), vr(vM), vr(ch[2])))
            a("v_mul_f32 %s, %s, %s" % (vr(ch[3]), sr(sC), vr(ch[3])))
            a("v_exp_f32 %s, %s" % (vr(vAlpha), vr(ch[3])))
            a("v_mov_b32 %s, %s" % (vr(vM), vr(ch[2])))
        mc = vT[4]
        a("v_mul_f32 %s, %s, %s" % (vr(mc), sr(sC), vr(vM)))
        for i in range(64):
            a("v_fma_f32 %s, %s, %s, -%s" % (vr(vS + i), vr(vS + i), sr(sC), vr(mc)))
        for i in range(64):
            a("v_exp_f32 %s, %s" % (vr(vS + i), vr(vS + i)))
        if kt > 0:
            for i in range(64):
                a("v_mul_f32 %s, %s, %s" % (vr(vACC + i), vr(vAlpha), vr(vACC + i)))
        for c in range(4):
            a("v_add_f32 %s, %s, %s" % (vr(ch[c]), vr(vS + 16 * c), vr(vS + 16 * c + 1)))
        for k in range(2, 16):
            for c in range(4):
                a("v_add_f32 %s, %s, %s" % (vr(ch[c]), vr(ch[c]), vr(vS + 16 * c + k)))
        for i in range(32):
            a("v_cvt_pk_bf16_f32 %s, %s, %s" % (vr(vPB + i), vr(vS + 2 * i), vr(vS + 2 * i + 1)))
        a("v_add_f32 %s, %s, %s" % (vr(ch[0]), vr(ch[0]), vr(ch[1])))
        a("v_add_f32 %s, %s, %s" % (vr(ch[2]), vr(ch[2]), vr(ch[3])))
        a("v_add_f32 %s, %s, %s" % (vr(ch[0]), vr(ch[0]), vr(ch[2])))
        if kt == 0:
            a("v_mov_b32 %s, %s" % (vr(vL), vr(ch[0])))
        else:
            a("v_fma_f32 %s, %s, %s, %s" % (vr(vL), vr(vL), vr(vAlpha), vr(ch[0])))

    for i in range(NT):
        kind, idx = tile_kind(i)
        slot = slot_of[i] * SLOT
        last = max(n for n, t in enumerate(vm_log) if t == i)
        a.comment("---- step %d: %s%d" % (i, kind, idx))
        a("s_waitcnt vmcnt(%d)" % (len(vm_log) - 1 - last))
        a("s_barrier")
        if i >= 1 and nissued < NT:
            issue_dma(IORD[nissued], slot_of[i - 1])
            nissued += 1
        kRd, tRd = vKrd, vTrd
        if slot >= 65536:
            slot -= 65536
            if kind == "K":
                for t in range(8):
                    a("v_add_u32 %s, 0x10000, %s" % (vr(vT[t]), vr(vKrd[t])))
                kRd = vT
            else:
                for t in range(4):
                    a("v_add_u32 %s, 0x10000, %s" % (vr(vT[t]), vr(vTrd[t])))
                tRd = vT
        items = []
        if kind == "W":
            for ks in range(4):
                for dt in range(4):
                    gk = 4 * idx + ks

                    def rd(f, k, dt=dt, ks=ks, tRd=tRd, slot=slot):
                        return "ds_read_b64_tr_b16 %s, %s offset:%d" % (vr(f + 2 * k, 2), vr(tRd[dt]), slot + (16 * ks + 4 * k) * 256)

                    def mf(f, dt=dt, gk=gk):
                        c = "0" if gk == 0 else vr(vACC + 16 * dt, 16)
                        return "v_mfma_f32_32x32x16_bf16 %s, %s, %s, %s" % (vr(vACC + 16 * dt, 16), vr(f, 4), vr(vX + 4 * gk, 4), c)
                    items.append(([rd, rd], mf))
            run_items(items)
            if idx == 7:
                a.comment("pack Q")
                a("s_nop 15")
                for T in range(8):
                    dt, t = T // 2, T % 2
                    for jj in range(4):
                        s0 = vACC + 16 * dt + 8 * t + 2 * jj
                        a("v_cvt_pk_bf16_f32 %s, %s, %s" % (vr(vQB + 4 * T + jj), vr(s0), vr(s0 + 1)))
                a("s_nop 1")
                if DEBUG == "q":
                    a("v_lshlrev_b32 %s, 4, v0" % vr(vXoff))
                    for T in range(8):
                        a("buffer_store_dwordx4 %s, %s, %s, 0 offen offset:%d" % (vr(vQB + 4 * T, 4), vr(vXoff), sr(sO, 4), 1024 * T))
                    a("s_waitcnt vmcnt(0)")
                    a("s_endpgm")
        elif kind == "K":
            half = idx % 2
            for sub in range(2):
                for T in range(8):
                    st = vS + 16 * (2 * half + sub)

                    def rd(f, k, T=T, sub=sub, kRd=kRd, slot=slot):
                        return "ds_read_b128 %s, %s offset:%d" % (vr(f, 4), vr(kRd[T]), slot + sub * 8192)

                    def mf(f, T=T, st=st):
                        c = "0" if T == 0 else vr(st, 16)
                        return "v_mfma_f32_32x32x16_bf16 %s, %s, %s, %s" % (vr(st, 16), vr(f, 4), vr(vQB + 4 * T, 4), c)
                    items.append(([rd], mf))
            run_items(items)
            if half == 1:
                softmax(idx // 2)
                a("s_nop 1")
        else:
            half = idx % 2
            for sub in range(2):
                for tp in range(2):
                    kst = 4 * half + 2 * sub + tp
                    for dt in range(4):
                        def rd(f, k, dt=dt, sub=sub, tp=tp, tRd=tRd, slot=slot):
                            return "ds_read_b64_tr_b16 %s, %s offset:%d" % (vr(f + 2 * k, 2), vr(tRd[dt]), slot + (32 * sub + 16 * tp + 4 * k) * 256)

                        def mf(f, dt=dt, kst=kst, idx=idx):
                            c = "0" if (idx == 0 and kst == 0) else vr(vACC + 16 * dt, 16)
                            return "v_mfma_f32_32x32x16_bf16 %s, %s, %s, %s" % (vr(vACC + 16 * dt, 16), vr(f, 4), vr(vPB + 4 * kst, 4), c)
                        items.append(([rd, rd], mf))
            run_items(items)
    a("v_mov_b32 %s, %s" % (vr(vT[1]), vr(vL)))
    a("s_nop 1")
    a("v_permlane32_swap_b32 %s, %s" % (vr(vL), vr(vT[1])))
    a("s_nop 1")
    a("v_add_f32 %s, %s, %s" % (vr(vL), vr(vL), vr(vT[1])))
    a("v_rcp_f32 %s, %s" % (vr(vL), vr(vL)))
    a("v_lshlrev_b32 %s, 4, v0" % vr(vXoff))
    a("s_nop 15")
    for i in range(64):
        a("v_mul_f32 %s, %s, %s" % (vr(vACC + i), vr(vL), vr(vACC + i)))
    for i in range(32):
        a("v_cvt_pk_bf16_f32 %s, %s, %s" % (vr(vS + i), vr(vACC + 2 * i), vr(vACC + 2 * i + 1)))
    a("s_mov_b32 %s, 4096" % sr(sOff))
    for T in range(8):
        a("buffer_store_dwordx4 %s, %s, %s, %s offen offset:%d%s" % (vr(vS + 4 * T, 4), vr(vXoff), sr(sO, 4), "0" if T < 4 else sr(sOff), 1024 * (T % 4), STFLAG))
    a.label("attn_done")
    a("s_endpgm")


def gen_oproj(a):
    SLOT = 16384
    D = int(os.environ.get("OD", "3"))
    NSLOT = D + 1
    NT = 32
    sWo, sO, sOut = 8, 12, 16
    sWave, sM0base, sOff, sBlk, sB, sN = 28, 29, 30, 31, 32, 33
    vDoff = 2
    vRd = [3, 4]
    vRdH = [6, 7]
    vBoff = 5
    vT = list(range(9, 16)) + [1]
    NB = 6
    vF = [16 + 4 * i for i in range(NB)]
    vACC = 40
    vB = 72
    vST = vB + 32 * NSLOT

    a.label("oproj_kernel")
    a("s_cmp_ge_u32 s2, 256")
    a("s_cbranch_scc1 oproj_done")
    a("s_and_b32 s3, s2, 7")
    a("s_lshr_b32 s4, s2, 3")
    a("s_lshr_b32 %s, s3, 2" % sr(sBlk))
    a("s_and_b32 s5, s3, 3")
    a("s_lshl_b32 s5, s5, 2")
    a("s_lshr_b32 s6, s4, 3")
    a("s_add_u32 %s, s5, s6" % sr(sB))
    a("s_and_b32 %s, s4, 7" % sr(sN))
    a("s_mul_i32 s3, %s, 40" % sr(sBlk))
    a("s_add_u32 s4, s0, s3")
    a("s_addc_u32 s5, s1, 0")
    a("s_load_dwordx2 s[40:41], s[4:5], 32")
    a("s_load_dwordx2 s[42:43], s[0:1], 80")
    a("s_load_dwordx2 s[44:45], s[0:1], 96")
    a("v_lshrrev_b32 v1, 6, v0")
    a("v_and_b32 v0, 63, v0")
    a("v_readfirstlane_b32 %s, v1" % sr(sWave))
    a("s_nop 3")
    a("s_lshl_b32 %s, %s, 12" % (sr(sM0base), sr(sWave)))
    a("v_lshrrev_b32 %s, 3, v0" % vr(vT[0]))
    a("s_lshl_b32 s3, %s, 5" % sr(sWave))
    a("v_add_u32 %s, s3, %s" % (vr(vT[0]), vr(vT[0])))
    a("v_and_b32 %s, 7, v0" % vr(vT[1]))
    a("v_bfe_u32 %s, v0, 4, 1" % vr(vT[2]))
    a("v_lshlrev_b32 %s, 2, %s" % (vr(vT[2]), vr(vT[2])))
    a("v_xor_b32 %s, %s, %s" % (vr(vT[1]), vr(vT[1]), vr(vT[2])))
    a("v_lshlrev_b32 %s, 4, %s" % (vr(vT[1]), vr(vT[1])))
    a("v_lshl_add_u32 %s, %s, 10, %s" % (vr(vDoff), vr(vT[0]), vr(vT[1])))
    if os.environ.get("WOLIN"):
        a("v_lshlrev_b32 %s, 4, v0" % vr(vDoff))
        a("v_add_u32 %s, %s, %s" % (vr(vDoff), sr(sM0base), vr(vDoff)))
    hh, r4, c4, mh, sw = vT[0], vT[1], vT[2], vT[3], vT[4]
    a("v_lshrrev_b32 %s, 5, v0" % vr(hh))
    a("v_bfe_u32 %s, v0, 2, 2" % vr(r4))
    a("v_and_b32 %s, 3, v0" % vr(c4))
    a("v_bfe_u32 %s, v0, 4, 1" % vr(mh))
    a("v_and_b32 %s, 1, %s" % (vr(sw), vr(c4)))
    a("v_lshlrev_b32 %s, 1, %s" % (vr(sw), vr(sw)))
    a("v_lshrrev_b32 %s, 1, %s" % (vr(vT[5]), vr(c4)))
    a("v_or_b32 %s, %s, %s" % (vr(sw), vr(sw), vr(vT[5])))
    a("v_lshl_add_u32 %s, %s, 3, %s" % (vr(vT[5]), vr(hh), vr(r4)))
    a("v_lshlrev_b32 %s, 7, %s" % (vr(vT[5]), vr(vT[5])))
    a("v_and_b32 %s, 1, %s" % (vr(vT[6]), vr(sw)))
    a("v_lshl_add_u32 %s, %s, 3, %s" % (vr(vT[5]), vr(vT[6]), vr(vT[5])))
    a("v_lshrrev_b32 %s, 1, %s" % (vr(vT[6]), vr(sw)))
    a("v_lshl_add_u32 %s, %s, 1, %s" % (vr(vT[6]), vr(mh), vr(vT[6])))
    a("v_lshrrev_b32 %s, 1, %s" % (vr(vT[7]), vr(r4)))
    a("v_lshlrev_b32 %s, 2, %s" % (vr(vT[7]), vr(vT[7])))
    a("v_xor_b32 %s, %s, %s" % (vr(vT[6]), vr(vT[6]), vr(vT[7])))
    a("v_lshl_add_u32 %s, %s, 4, %s" % (vr(vRd[0]), vr(vT[6]), vr(vT[5])))
    a("v_xor_b32 %s, 64, %s" % (vr(vRd[1]), vr(vRd[0])))
    a("v_add_u32 %s, 0x10000, %s" % (vr(vRdH[0]), vr(vRd[0])))
    a("v_add_u32 %s, 0x10000, %s" % (vr(vRdH[1]), vr(vRd[1])))
    a("v_lshlrev_b32 %s, 4, v0" % vr(vBoff))
    a("s_waitcnt lgkmcnt(0)")
    a("s_lshl_b32 s3, %s, 7" % sr(sN))
    a("s_add_u32 %s, s40, s3" % sr(sWo))
    a("s_addc_u32 %s, s41, 0" % sr(sWo + 1))
    a("s_sub_u32 %s, 4194304, s3" % sr(sWo + 2))
    a("s_mov_b32 %s, 0x20000" % sr(sWo + 3))
    a("s_lshl_b32 s3, %s, 6" % sr(sBlk))
    a("s_lshl_b32 s4, %s, 2" % sr(sB))
    a("s_add_u32 s3, s3, s4")
    a("s_add_u32 s3, s3, %s" % sr(sWave))
    a("s_lshl_b32 s3, s3, 18")
    a("s_add_u32 %s, s44, s3" % sr(sO))
    a("s_addc_u32 %s, s45, 0" % sr(sO + 1))
    a("s_mov_b32 %s, 262144" % sr(sO + 2))
    a("s_mov_b32 %s, 0x20000" % sr(sO + 3))
    a("s_lshl_b32 s3, %s, 7" % sr(sB))
    a("s_lshl_b32 s4, %s, 5" % sr(sWave))
    a("s_add_u32 s3, s3, s4")
    a("s_lshl_b32 s3, s3, 11")
    a("s_lshl_b32 s4, %s, 10" % sr(sBlk))
    a("s_add_u32 s3, s3, s4")
    a("s_lshl_b32 s4, %s, 7" % sr(sN))
    a("s_add_u32 s3, s3, s4")
    a("s_add_u32 %s, s42, s3" % sr(sOut))
    a("s_addc_u32 %s, s43, 0" % sr(sOut + 1))
    a("s_sub_u32 %s, 4194304, s3" % sr(sOut + 2))
    a("s_mov_b32 %s, 0x20000" % sr(sOut + 3))

    vWr = 8
    a("v_lshrrev_b32 %s, 3, v0" % vr(vT[0]))
    a("s_lshl_b32 s3, %s, 5" % sr(sWave))
    a("v_add_u32 %s, s3, %s" % (vr(vT[0]), vr(vT[0])))
    a("v_and_b32 %s, 7, v0" % vr(vT[1]))
    a("v_lshlrev_b32 %s, 4, %s" % (vr(vT[3]), vr(vT[1])))
    a("v_lshl_add_u32 %s, %s, 10, %s" % (vr(vDoff), vr(vT[0]), vr(vT[3])))
    if os.environ.get("WOLIN"):
        a("v_lshlrev_b32 %s, 4, v0" % vr(vDoff))
        a("s_lshl_b32 s3, %s, 19" % sr(sN))
        a("s_add_u32 s3, s3, %s" % sr(sM0base))
        a("v_add_u32 %s, s3, %s" % (vr(vDoff), vr(vDoff)))
    a("v_bfe_u32 %s, v0, 4, 1" % vr(vT[2]))
    a("v_lshlrev_b32 %s, 2, %s" % (vr(vT[2]), vr(vT[2])))
    a("v_xor_b32 %s, %s, %s" % (vr(vT[1]), vr(vT[1]), vr(vT[2])))
    a("v_lshlrev_b32 %s, 4, %s" % (vr(vT[1]), vr(vT[1])))
    a("v_lshl_add_u32 %s, %s, 7, %s" % (vr(vWr), vr(vT[0]), vr(vT[1])))

    def issue_w(i):
        base = vST + 16 * (i % D)
        for j in range(4):
            a("s_mov_b32 %s, %d" % (sr(sOff), (i * 16384 + j * 1024) if os.environ.get("WOLIN") else (i * 128 * 1024 + j * 8192)))
            a("buffer_load_dwordx4 %s, %s, %s, %s offen" % (vr(base + 4 * j, 4), vr(vDoff), sr(sWo, 4), sr(sOff)))

    def write_w(i):
        base = vST + 16 * (i % D)
        slot = (i % 2) * SLOT
        for j in range(4):
            a("ds_write_b128 %s, %s offset:%d" % (vr(vWr), vr(base + 4 * j, 4), slot + 1024 * j))

    def issue_b(i):
        base = vB + 32 * (i % NSLOT)
        a("s_mov_b32 %s, %d" % (sr(sOff), i * 8192))
        for ks in range(8):
            a("buffer_load_dwordx4 %s, %s, %s, %s offen offset:%d" % (vr(base + 4 * ks, 4), vr(vBoff), sr(sO, 4), sr(sOff), 1024 * (ks % 4)))
            if ks == 3:
                a("s_mov_b32 %s, %d" % (sr(sOff), i * 8192 + 4096))

    for i in range(D):
        issue_w(i)
        issue_b(i)
    a("s_waitcnt vmcnt(%d)" % (12 * D - 4))
    write_w(0)

    def run_items(items, extra=None):
        n = len(items)
        per = len(items[0][0])

        def issue(j):
            f = vF[j % NB]
            for k, rd in enumerate(items[j][0]):
                a(rd(f, k))
        for j in range(min(NB, n)):
            issue(j)
        for j in range(n):
            issued = min(n, j + NB)
            a("s_waitcnt lgkmcnt(%d)" % ((issued - j - 1) * per))
            a(items[j][1](vF[j % NB]))
            if j + NB < n:
                issue(j + NB)

    for i in range(NT):
        slot = (i % 2) * SLOT
        a.comment("---- step %d" % i)
        last = min(NT - 1, i + D - 1)
        if i + 1 <= last:
            n = 8 + 12 * (last - (i + 1))
        else:
            n = 0
        a("s_waitcnt vmcnt(%d) lgkmcnt(0)" % n)
        a("s_barrier")
        if i + 1 < NT:
            write_w(i + 1)
        if i + D < NT:
            issue_w(i + D)
            issue_b(i + D)
        items = []
        for ks in range(8):
            for nt in range(2):
                def rd(f, k, nt=nt, ks=ks):
                    off = slot + (16 * ks + 4 * k) * 128
                    return "ds_read_b64_tr_b16 %s, %s offset:%d" % (vr(f + 2 * k, 2), vr(vRd[nt]), off)

                def mf(f, nt=nt, ks=ks, i=i):
                    c = "0" if (i == 0 and ks == 0) else vr(vACC + 16 * nt, 16)
                    return "v_mfma_f32_32x32x16_bf16 %s, %s, %s, %s" % (vr(vACC + 16 * nt, 16), vr(f, 4), vr(vB + 32 * (i % NSLOT) + 4 * ks, 4), c)
                items.append(([rd, rd], mf))
        run_items(items)
    a("v_and_b32 %s, 31, v0" % vr(vT[0]))
    a("v_lshrrev_b32 %s, 5, v0" % vr(vT[1]))
    a("v_lshlrev_b32 %s, 11, %s" % (vr(vT[0]), vr(vT[0])))
    a("v_lshl_add_u32 %s, %s, 4, %s" % (vr(vT[0]), vr(vT[1]), vr(vT[0])))
    a("s_nop 15")
    for i in range(16):
        a("v_cvt_pk_bf16_f32 %s, %s, %s" % (vr(vB + i), vr(vACC + 2 * i), vr(vACC + 2 * i + 1)))
    for T in range(4):
        a("buffer_store_dwordx4 %s, %s, %s, 0 offen offset:%d" % (vr(vB + 4 * T, 4), vr(vT[0]), sr(sOut, 4), 32 * T))
    a.label("oproj_done")
    a("s_endpgm")


def kd(name, vgpr, sgpr):
    return """.amdhsa_kernel %s
  .amdhsa_next_free_vgpr %d
  .amdhsa_next_free_sgpr %d
  .amdhsa_accum_offset %d
  .amdhsa_group_segment_fixed_size 0
  .amdhsa_kernarg_size 104
  .amdhsa_user_sgpr_count 2
  .amdhsa_user_sgpr_kernarg_segment_ptr 1
  .amdhsa_system_sgpr_workgroup_id_x 1
.end_amdhsa_kernel
""" % (name, vgpr, sgpr, (vgpr + 3) // 4 * 4)


def main():
    out = HEADER.replace("OPROJ_LDS", "32768").replace("ATTN_LDS", str(16384 * int(os.environ.get("NSLOT", "5"))))
    for name, fn in (("attn_kernel", gen_attn), ("oproj_kernel", gen_oproj)):
        a = Asm()
        fn(a)
        out += ".globl %s\n.p2align 8\n.type %s,@function\n" % (name, name)
        out += a.text()
    out += '.section .rodata,"a"\n.p2align 6\n'
    out += kd("attn_kernel", 248, 64)
    out += ".p2align 6\n"
    out += kd("oproj_kernel", 248, 64)
    path = sys.argv[1] if len(sys.argv) > 1 else OUT
    open(path, "w").write(out)
    print("wrote", path, len(out))


if __name__ == "__main__":
    main()
```

```python
import sys, os
import gen as g1
from gen import Asm, vr, sr, f32bits, SCALE_LOG2E, kd, NAME, OUT, gen_oproj

KVFLAG = os.environ.get("KVFLAG", " nt")
STFLAG = os.environ.get("STFLAG", " sc1")
E = os.environ.get


def ar(a, n=1):
    return "a%d" % a if n == 1 else "a[%d:%d]" % (a, a + n - 1)


HEADER = g1.HEADER.split("; @launch")[0] + """; @launch kernel=attn_kernel grid=(256,1,1) block=(256,1,1) lds=131072
; @launch kernel=oproj_kernel grid=(256,1,1) block=(256,1,1) lds=32768
.amdgcn_target "amdgcn-amd-amdhsa--gfx950"
.text
"""


def gen_attn3(a):
    SLOT = 16384
    NSLOT = 8
    PF = NSLOT - 1
    NB = 8
    NXB = 4
    sKc, sVc, sKn, sVn, sWc, sWn, sXc, sXn, sOp = 8, 12, 16, 20, 24, 28, 32, 36, 40
    sWave, sM0base, sC, sOff, sIter, sH, sJ4, sM0b2 = 44, 45, 46, 47, 48, 49, 50, 74
    sT = list(range(51, 56))
    sPA, sPB_, sWs = 56, 64, 72
    vKoff = [2, 3, 4, 5]
    vVoff, vWoff = 6, 7
    vKrd = [list(range(8, 16)), list(range(16, 24))]
    vTrd = [list(range(24, 28)), list(range(28, 32))]
    vXoff, vOoff = 32, 33
    vM, vL, vAlpha = 34, 35, 36
    vT = list(range(40, 48))
    vACC = 48
    vS = 112
    vPB = 176
    vQB = 208
    vQT = 240
    vET = 248
    vXrd = [[250, 251], [252, 253]]
    aQ = 0
    aF = [64 + 4 * i for i in range(NB)]
    aXB = [96 + 4 * i for i in range(NXB)]

    a.label("attn_kernel")
    a("s_cmp_ge_u32 s2, 256")
    a("s_cbranch_scc1 attn_done")
    if E("STAMP"):
        a("s_memtime s[80:81]")
        a("s_memrealtime s[82:83]")
        a("s_load_dwordx2 s[88:89], s[0:1], 88")
    a("s_load_dwordx8 s[%d:%d], s[0:1], 0" % (sPA, sPA + 7))
    a("s_load_dwordx8 s[%d:%d], s[0:1], 40" % (sPB_, sPB_ + 7))
    a("s_load_dwordx2 s[%d:%d], s[0:1], 96" % (sWs, sWs + 1))
    a("s_load_dwordx2 s[76:77], s[0:1], 32")
    a("s_load_dwordx2 s[78:79], s[0:1], 72")
    a("s_and_b32 s3, s2, 7")
    a("s_lshr_b32 s4, s2, 3")
    a("s_and_b32 s5, s4, 3")
    a("s_lshl_b32 s5, s5, 3")
    a("s_add_u32 %s, s3, s5" % sr(sH))
    a("s_lshr_b32 %s, s4, 2" % sr(sJ4))
    a("v_lshrrev_b32 v1, 6, v0")
    a("v_and_b32 v0, 63, v0")
    a("v_readfirstlane_b32 %s, v1" % sr(sWave))
    a("s_mov_b32 %s, 0x%08x" % (sr(sC), f32bits(SCALE_LOG2E)))
    a("s_lshl_b32 %s, %s, 12" % (sr(sM0base), sr(sWave)))
    a("s_lshl_b32 %s, %s, 11" % (sr(sM0b2), sr(sWave)))
    rr, p = vT[0], vT[1]
    a("v_lshrrev_b32 %s, 4, v0" % vr(rr))
    a("v_and_b32 %s, 15, v0" % vr(p))
    a("s_lshl_b32 s3, %s, 4" % sr(sWave))
    a("v_add_u32 %s, s3, %s" % (vr(vT[2]), vr(rr)))
    for j in range(4):
        a("v_add_u32 %s, %d, %s" % (vr(vT[3]), 4 * j, vr(rr)))
        a("v_xor_b32 %s, %s, %s" % (vr(vT[3]), vr(vT[3]), vr(p)))
        a("v_lshlrev_b32 %s, 4, %s" % (vr(vT[3]), vr(vT[3])))
        a("v_lshl_add_u32 %s, %s, 8, %s" % (vr(vKoff[j]), vr(vT[2]), vr(vT[3])))
    a("v_lshlrev_b32 %s, 2, %s" % (vr(vT[3]), vr(rr)))
    a("v_xor_b32 %s, %s, %s" % (vr(vT[3]), vr(vT[3]), vr(p)))
    a("v_lshlrev_b32 %s, 4, %s" % (vr(vT[3]), vr(vT[3])))
    a("v_lshl_add_u32 %s, %s, 8, %s" % (vr(vVoff), vr(vT[2]), vr(vT[3])))
    a("s_lshl_b32 s3, %s, 3" % sr(sWave))
    a("v_add_u32 %s, s3, %s" % (vr(vT[2]), vr(rr)))
    a("v_lshl_add_u32 %s, %s, 13, %s" % (vr(vWoff), vr(vT[2]), vr(vT[3])))
    a("v_lshrrev_b32 %s, 2, v0" % vr(vT[2]))
    a("s_lshl_b32 s3, %s, 5" % sr(sWave))
    a("v_add_u32 %s, s3, %s" % (vr(vT[2]), vr(vT[2])))
    a("v_and_b32 %s, 3, v0" % vr(vT[3]))
    a("v_xor_b32 %s, %s, %s" % (vr(vT[3]), vr(vT[3]), vr(rr)))
    a("v_lshlrev_b32 %s, 4, %s" % (vr(vT[3]), vr(vT[3])))
    a("v_lshl_add_u32 %s, %s, 10, %s" % (vr(vXoff), vr(vT[2]), vr(vT[3])))
    r, hh, pr = vT[0], vT[1], vT[2]
    a("v_and_b32 %s, 31, v0" % vr(r))
    a("v_lshrrev_b32 %s, 5, v0" % vr(hh))
    a("v_and_b32 %s, 0x13, %s" % (vr(pr), vr(r)))
    a("v_and_b32 %s, 4, %s" % (vr(vT[3]), vr(r)))
    a("v_lshl_or_b32 %s, %s, 1, %s" % (vr(pr), vr(vT[3]), vr(pr)))
    a("v_and_b32 %s, 8, %s" % (vr(vT[3]), vr(r)))
    a("v_lshrrev_b32 %s, 1, %s" % (vr(vT[3]), vr(vT[3])))
    a("v_or_b32 %s, %s, %s" % (vr(pr), vr(pr), vr(vT[3])))
    a("v_and_b32 %s, 15, %s" % (vr(vT[4]), vr(pr)))
    for t in range(8):
        a("v_add_u32 %s, %d, %s" % (vr(vT[3]), 2 * t, vr(hh)))
        a("v_xor_b32 %s, %s, %s" % (vr(vT[3]), vr(vT[3]), vr(vT[4])))
        a("v_lshlrev_b32 %s, 4, %s" % (vr(vT[3]), vr(vT[3])))
        a("v_lshl_add_u32 %s, %s, 8, %s" % (vr(vKrd[0][t]), vr(pr), vr(vT[3])))
        a("v_add_u32 %s, 0x10000, %s" % (vr(vKrd[1][t]), vr(vKrd[0][t])))
    a("s_lshl_b32 s3, %s, 5" % sr(sWave))
    a("v_add_u32 %s, s3, %s" % (vr(vT[3]), vr(r)))
    a("v_lshlrev_b32 %s, 6, %s" % (vr(vT[3]), vr(vT[3])))
    a("v_add_u32 %s, 0x2000, %s" % (vr(vT[3]), vr(vT[3])))
    a("v_bfe_u32 %s, %s, 2, 2" % (vr(vT[4]), vr(r)))
    for ks in range(2):
        a("v_add_u32 %s, %d, %s" % (vr(vT[5]), 2 * ks, vr(hh)))
        a("v_xor_b32 %s, %s, %s" % (vr(vT[5]), vr(vT[5]), vr(vT[4])))
        a("v_lshl_add_u32 %s, %s, 4, %s" % (vr(vXrd[0][ks]), vr(vT[5]), vr(vT[3])))
        a("v_add_u32 %s, 0x10000, %s" % (vr(vXrd[1][ks]), vr(vXrd[0][ks])))
    a("v_lshlrev_b32 %s, 4, v0" % vr(vOoff))
    r4, c4, mh, sw = vT[0], vT[2], vT[3], vT[4]
    a("v_bfe_u32 %s, v0, 2, 2" % vr(r4))
    a("v_and_b32 %s, 3, v0" % vr(c4))
    a("v_bfe_u32 %s, v0, 4, 1" % vr(mh))
    a("v_and_b32 %s, 1, %s" % (vr(sw), vr(c4)))
    a("v_lshlrev_b32 %s, 1, %s" % (vr(sw), vr(sw)))
    a("v_lshrrev_b32 %s, 1, %s" % (vr(vT[5]), vr(c4)))
    a("v_or_b32 %s, %s, %s" % (vr(sw), vr(sw), vr(vT[5])))
    a("v_lshl_add_u32 %s, %s, 3, %s" % (vr(vT[5]), vr(hh), vr(r4)))
    a("v_lshlrev_b32 %s, 8, %s" % (vr(vT[5]), vr(vT[5])))
    a("v_lshrrev_b32 %s, 1, %s" % (vr(vT[6]), vr(sw)))
    a("v_lshl_add_u32 %s, %s, 1, %s" % (vr(vT[6]), vr(mh), vr(vT[6])))
    a("v_lshl_add_u32 %s, %s, 4, %s" % (vr(vT[5]), vr(vT[6]), vr(vT[5])))
    a("v_and_b32 %s, 1, %s" % (vr(vT[6]), vr(sw)))
    a("v_lshl_add_u32 %s, %s, 3, %s" % (vr(vT[5]), vr(vT[6]), vr(vT[5])))
    for dt in range(4):
        a("v_xor_b32 %s, %d, %s" % (vr(vT[6]), dt, vr(r4)))
        a("v_lshl_add_u32 %s, %s, 6, %s" % (vr(vTrd[0][dt]), vr(vT[6]), vr(vT[5])))
        a("v_add_u32 %s, 0x10000, %s" % (vr(vTrd[1][dt]), vr(vTrd[0][dt])))
    a("s_waitcnt lgkmcnt(0)")

    def task_params(o, sR):
        o("s_and_b32 %s, %s, 1" % (sr(sT[1]), sr(sR)))
        o("s_lshl_b32 %s, %s, 3" % (sr(sT[1]), sr(sT[1])))
        o("s_add_u32 %s, %s, %s" % (sr(sT[1]), sr(sT[1]), sr(sJ4)))
        o("s_lshr_b32 %s, %s, 1" % (sr(sT[0]), sr(sR)))

    def sel_ptr(o, dst, idx):
        o("s_cmp_eq_u32 %s, 0" % sr(sT[0]))
        o("s_cselect_b32 %s, %s, %s" % (sr(dst), sr(sPA + 2 * idx), sr(sPB_ + 2 * idx)))
        o("s_cselect_b32 %s, %s, %s" % (sr(dst + 1), sr(sPA + 2 * idx + 1), sr(sPB_ + 2 * idx + 1)))

    def set_kv(o, sK, sV, sR):
        task_params(o, sR)
        o("s_lshl_b32 %s, %s, 5" % (sr(sT[2]), sr(sT[1])))
        o("s_add_u32 %s, %s, %s" % (sr(sT[2]), sr(sT[2]), sr(sH)))
        o("s_lshl_b32 %s, %s, 17" % (sr(sT[2]), sr(sT[2])))
        for srd, idx in ((sK, 1), (sV, 2)):
            sel_ptr(o, srd, idx)
            o("s_add_u32 %s, %s, %s" % (sr(srd), sr(srd), sr(sT[2])))
            o("s_addc_u32 %s, %s, 0" % (sr(srd + 1), sr(srd + 1)))
            o("s_cmp_lt_u32 %s, 2" % sr(sT[0]))
            o("s_cselect_b32 %s, 131072, 0" % sr(srd + 2))
            o("s_mov_b32 %s, 0x20000" % sr(srd + 3))

    def set_wx(o, sW, sX, sR):
        task_params(o, sR)
        sel_ptr(o, sW, 3)
        o("s_lshl_b32 %s, %s, 8" % (sr(sT[2]), sr(sH)))
        o("s_add_u32 %s, %s, %s" % (sr(sW), sr(sW), sr(sT[2])))
        o("s_addc_u32 %s, %s, 0" % (sr(sW + 1), sr(sW + 1)))
        o("s_sub_u32 %s, 4194304, %s" % (sr(sT[2]), sr(sT[2])))
        o("s_cmp_lt_u32 %s, 2" % sr(sT[0]))
        o("s_cselect_b32 %s, %s, 0" % (sr(sW + 2), sr(sT[2])))
        o("s_mov_b32 %s, 0x20000" % sr(sW + 3))
        sel_ptr(o, sX, 0)
        o("s_lshl_b32 %s, %s, 17" % (sr(sT[2]), sr(sT[1])))
        o("s_add_u32 %s, %s, %s" % (sr(sX), sr(sX), sr(sT[2])))
        o("s_addc_u32 %s, %s, 0" % (sr(sX + 1), sr(sX + 1)))
        o("s_cmp_lt_u32 %s, 2" % sr(sT[0]))
        o("s_cselect_b32 %s, 131072, 0" % sr(sX + 2))
        o("s_mov_b32 %s, 0x20000" % sr(sX + 3))

    def set_o(o, sO, sR, valid=True):
        task_params(o, sR)
        o("s_lshl_b32 %s, %s, 6" % (sr(sT[2]), sr(sT[0])))
        o("s_lshl_b32 %s, %s, 2" % (sr(sT[3]), sr(sT[1])))
        o("s_add_u32 %s, %s, %s" % (sr(sT[2]), sr(sT[2]), sr(sT[3])))
        o("s_add_u32 %s, %s, %s" % (sr(sT[2]), sr(sT[2]), sr(sWave)))
        o("s_lshl_b32 %s, %s, 8" % (sr(sT[2]), sr(sT[2])))
        o("s_lshl_b32 %s, %s, 3" % (sr(sT[3]), sr(sH)))
        o("s_add_u32 %s, %s, %s" % (sr(sT[2]), sr(sT[2]), sr(sT[3])))
        o("s_lshl_b32 %s, %s, 10" % (sr(sT[2]), sr(sT[2])))
        o("s_add_u32 %s, %s, %s" % (sr(sO), sr(sWs), sr(sT[2])))
        o("s_addc_u32 %s, %s, 0" % (sr(sO + 1), sr(sWs + 1)))
        o("s_mov_b32 %s, %d" % (sr(sO + 2), 8192 if valid else 0))
        o("s_mov_b32 %s, 0x20000" % sr(sO + 3))

    def cp4(o, d, s):
        o("s_mov_b64 %s, %s" % (sr(d, 2), sr(s, 2)))
        o("s_mov_b64 %s, %s" % (sr(d + 2, 2), sr(s + 2, 2)))

    a("s_mov_b32 %s, 0" % sr(sIter))
    a("s_mov_b32 %s, 0" % sr(sT[4]))
    set_wx(a, sWc, sXc, sT[4])
    set_kv(a, sKn, sVn, sT[4])
    set_kv(a, sKc, sVc, sT[4])
    set_o(a, sOp, sT[4], valid=False)
    a("s_mov_b32 %s, 1" % sr(sT[4]))
    set_wx(a, sWn, sXn, sT[4])

    def iter_tiles(n):
        t = []
        for kt in range(4):
            t += [("K", 2 * kt, n), ("K", 2 * kt + 1, n)] + [("W", 4 * kt + i, n) for i in range(4)] + [("V", 2 * kt, n), ("V", 2 * kt + 1, n)]
        return t
    NIT = 4
    tiles = [("W", i, -1) for i in range(16)]
    for n in range(NIT + 1):
        tiles += iter_tiles(n)

    ch = vT[0:4]
    mc = vT[4]

    def max_part(cs):
        L = []
        for c in cs:
            L.append("v_max3_f32 %s, %s, %s, %s" % (vr(ch[c]), vr(vS + 16 * c), vr(vS + 16 * c + 1), vr(vS + 16 * c + 2)))
        for k in range(3, 15, 2):
            for c in cs:
                L.append("v_max3_f32 %s, %s, %s, %s" % (vr(ch[c]), vr(ch[c]), vr(vS + 16 * c + k), vr(vS + 16 * c + k + 1)))
        for c in cs:
            L.append("v_max_f32 %s, %s, %s" % (vr(ch[c]), vr(ch[c]), vr(vS + 16 * c + 15)))
        return L

    def max_fin(kt):
        L = []
        L.append("v_max3_f32 %s, %s, %s, %s" % (vr(ch[0]), vr(ch[0]), vr(ch[1]), vr(ch[2])))
        L.append("v_max_f32 %s, %s, %s" % (vr(ch[0]), vr(ch[0]), vr(ch[3])))
        L.append("v_mov_b32 %s, %s" % (vr(ch[1]), vr(ch[0])))
        L.append("s_nop 1")
        L.append("v_permlane32_swap_b32 %s, %s" % (vr(ch[0]), vr(ch[1])))
        L.append("s_nop 1")
        if kt == 0:
            L.append("v_max_f32 %s, %s, %s" % (vr(vM), vr(ch[0]), vr(ch[1])))
        else:
            L.append("v_max3_f32 %s, %s, %s, %s" % (vr(ch[2]), vr(ch[0]), vr(ch[1]), vr(vM)))
            L.append("v_sub_f32 %s, %s, %s" % (vr(ch[3]), vr(vM), vr(ch[2])))
            L.append("v_mul_f32 %s, %s, %s" % (vr(ch[3]), sr(sC), vr(ch[3])))
            L.append("v_exp_f32 %s, %s" % (vr(vAlpha), vr(ch[3])))
            L.append("v_mov_b32 %s, %s" % (vr(vM), vr(ch[2])))
        L.append("v_mul_f32 %s, %s, %s" % (vr(mc), sr(sC), vr(vM)))
        return L

    def exp_part(lo, hi, extra=()):
        L = []
        extra = list(extra)
        ng = (hi - lo) // 4
        for gi in range(ng):
            b = lo + 4 * gi
            for i in range(b, b + 4):
                L.append("v_fma_f32 %s, %s, %s, -%s" % (vr(vS + i), vr(vS + i), sr(sC), vr(mc)))
            for i in range(b, b + 4):
                L.append("v_exp_f32 %s, %s" % (vr(vS + i), vr(vS + i)))
            k = len(extra) // ng
            L += extra[gi * k:(gi + 1) * k]
            if gi > 0:
                for i in range(b - 4, b, 2):
                    L.append("v_cvt_pk_bf16_f32 %s, %s, %s" % (vr(vPB + i // 2), vr(vS + i), vr(vS + i + 1)))
        L.append("s_nop 0")
        for i in range(hi - 4, hi, 2):
            L.append("v_cvt_pk_bf16_f32 %s, %s, %s" % (vr(vPB + i // 2), vr(vS + i), vr(vS + i + 1)))
        return L

    def resc_part():
        return ["v_mul_f32 %s, %s, %s" % (vr(vACC + i), vr(vAlpha), vr(vACC + i)) for i in range(64)]

    def sum_part(kt):
        L = []
        for c in range(4):
            L.append("v_add_f32 %s, %s, %s" % (vr(ch[c]), vr(vS + 16 * c), vr(vS + 16 * c + 1)))
        for k in range(2, 16):
            for c in range(4):
                L.append("v_add_f32 %s, %s, %s" % (vr(ch[c]), vr(ch[c]), vr(vS + 16 * c + k)))
        L.append("v_add_f32 %s, %s, %s" % (vr(ch[0]), vr(ch[0]), vr(ch[1])))
        L.append("v_add_f32 %s, %s, %s" % (vr(ch[2]), vr(ch[2]), vr(ch[3])))
        L.append("v_add_f32 %s, %s, %s" % (vr(ch[0]), vr(ch[0]), vr(ch[2])))
        if kt == 0:
            L.append("v_mov_b32 %s, %s" % (vr(vL), vr(ch[0])))
        else:
            L.append("v_fma_f32 %s, %s, %s, %s" % (vr(vL), vr(vL), vr(vAlpha), vr(ch[0])))
        return L

    def merge(A, B):
        out, ia, ib = [], 0, 0
        while ia < len(A) or ib < len(B):
            if ib >= len(B) or (ia < len(A) and ia * len(B) <= ib * len(A)):
                out.append(A[ia]); ia += 1
            else:
                out.append(B[ib]); ib += 1
        return out

    def qpack_list():
        L = []
        for T in range(8):
            dt, t = T // 2, T % 2
            for e in range(8):
                L.append("v_accvgpr_read_b32 %s, %s" % (vr(vQT + e), ar(aQ + 16 * dt + 8 * t + e)))
            for jj in range(4):
                L.append("v_cvt_pk_bf16_f32 %s, %s, %s" % (vr(vQB + 4 * T + jj), vr(vQT + 2 * jj), vr(vQT + 2 * jj + 1)))
        return L

    def epilogue_list(sO):
        L = []
        L.append("v_mov_b32 %s, %s" % (vr(vET), vr(vL)))
        L.append("s_nop 1")
        L.append("v_permlane32_swap_b32 %s, %s" % (vr(vL), vr(vET)))
        L.append("s_nop 1")
        L.append("v_add_f32 %s, %s, %s" % (vr(vL), vr(vL), vr(vET)))
        L.append("v_rcp_f32 %s, %s" % (vr(vL), vr(vL)))
        L.append("s_nop 0")
        for T in range(8):
            for i in range(8 * T, 8 * T + 8):
                L.append("v_mul_f32 %s, %s, %s" % (vr(vACC + i), vr(vL), vr(vACC + i)))
            for i in range(4 * T, 4 * T + 4):
                L.append("v_cvt_pk_bf16_f32 %s, %s, %s" % (vr(vPB + i), vr(vACC + 2 * i), vr(vACC + 2 * i + 1)))
            if T == 4:
                L.append("s_mov_b32 %s, 4096" % sr(sT[0]))
            L.append("buffer_store_dwordx4 %s, %s, %s, %s offen offset:%d%s" % (vr(vPB + 4 * T, 4), vr(vOoff), sr(sO, 4), "0" if T < 4 else sr(sT[0]), 1024 * (T % 4), STFLAG))
        return L

    def tile_items(g):
        kind, idx, n = tiles[g]
        slot = (g % NSLOT) * SLOT
        hi = 1 if slot >= 65536 else 0
        slot -= 65536 * hi
        items = []
        if kind == "W":
            for ks in range(2):
                gk = 2 * idx + ks
                xb = aXB[gk % NXB]
                for dt in range(4):
                    reads = [("ds_read_b64_tr_b16 %%s, %s offset:%d" % (vr(vTrd[hi][dt]), slot + (16 * ks + 4 * k) * 256), 2 * k, 2) for k in range(2)]
                    if dt == 0:
                        reads.append(("ds_read_b128 %s, %s offset:%d" % (ar(xb, 4), vr(vXrd[hi][ks]), slot), None, 0))
                    c = "0" if gk == 0 else ar(aQ + 16 * dt, 16)
                    mf = "v_mfma_f32_32x32x16_bf16 %s, %%s, %s, %s" % (ar(aQ + 16 * dt, 16), ar(xb, 4), c)
                    items.append((reads, mf))
        elif kind == "K":
            half = idx % 2
            for sub in range(2):
                for T in range(8):
                    st = vS + 16 * (2 * half + sub)
                    reads = [("ds_read_b128 %%s, %s offset:%d" % (vr(vKrd[hi][T]), slot + sub * 8192), 0, 4)]
                    c = "0" if T == 0 else vr(st, 16)
                    mf = "v_mfma_f32_32x32x16_bf16 %s, %%s, %s, %s" % (vr(st, 16), vr(vQB + 4 * T, 4), c)
                    items.append((reads, mf))
        else:
            half = idx % 2
            for sub in range(2):
                for tp in range(2):
                    kst = 4 * half + 2 * sub + tp
                    for dt in range(4):
                        reads = [("ds_read_b64_tr_b16 %%s, %s offset:%d" % (vr(vTrd[hi][dt]), slot + (32 * sub + 16 * tp + 4 * k) * 256), 2 * k, 2) for k in range(2)]
                        c = "0" if (idx == 0 and kst == 0) else vr(vACC + 16 * dt, 16)
                        mf = "v_mfma_f32_32x32x16_bf16 %s, %%s, %s, %s" % (vr(vACC + 16 * dt, 16), vr(vPB + 4 * kst, 4), c)
                        items.append((reads, mf))
        return items

    allitems = []
    tile_first = {}
    for g in range(len(tiles)):
        tile_first[g] = len(allitems)
        for (reads, mf) in tile_items(g):
            allitems.append((g, reads, mf))

    def simulate(site_min):
        sections = {}
        st = {"cur": "pro"}
        sections["pro"] = []
        vm_log = []
        lg_log = []
        measured = {}

        def out(s):
            sections[st["cur"]].append(s)

        def dma_pieces(gt, cur_iter):
            kind, idx, n = tiles[gt]
            slot = (gt % NSLOT) * SLOT
            nxt = n != cur_iter
            P = []
            for j in range(4):
                if kind == "W":
                    if j < 2:
                        P.append(["s_add_u32 m0, %s, %d" % (sr(sM0b2), slot + 1024 * j),
                                  "s_mov_b32 %s, %d" % (sr(sOff), idx * 32 * 8192 + j * 32768),
                                  "buffer_load_dwordx4 %s, %s, %s offen lds" % (vr(vWoff), sr(sWn if nxt else sWc, 4), sr(sOff))])
                    else:
                        P.append(["s_add_u32 m0, %s, %d" % (sr(sM0b2), slot + 8192 + 1024 * (j - 2)),
                                  "s_mov_b32 %s, %d" % (sr(sOff), idx * 64 + (j - 2) * 16384),
                                  "buffer_load_dwordx4 %s, %s, %s offen lds" % (vr(vXoff), sr(sXn if nxt else sXc, 4), sr(sOff))])
                elif kind == "K":
                    P.append(["s_add_u32 m0, %s, %d" % (sr(sM0base), slot),
                              "s_mov_b32 %s, %d" % (sr(sOff), idx * 16384),
                              "buffer_load_dwordx4 %s, %s, %s offen offset:%d%s lds" % (vr(vKoff[j]), sr(sKn if nxt else sKc, 4), sr(sOff), 1024 * j, KVFLAG)])
                else:
                    P.append(["s_add_u32 m0, %s, %d" % (sr(sM0base), slot),
                              "s_mov_b32 %s, %d" % (sr(sOff), idx * 16384),
                              "buffer_load_dwordx4 %s, %s, %s offen offset:%d%s lds" % (vr(vVoff), sr(sVn if nxt else sVc, 4), sr(sOff), 1024 * j, KVFLAG)])
            return P

        def dma(gt, cur_iter):
            for piece in dma_pieces(gt, cur_iter):
                for x in piece:
                    out(x)
                vm_log.append(gt)

        def issue_reads(j):
            g, reads, mf = allitems[j]
            f = aF[j % NB]
            for (txt, off, n) in reads:
                out(txt if off is None else txt % ar(f + off, n))
                lg_log.append(j)

        if E("PSTAMP"):
            out("s_memtime s[84:85]")
            out("s_waitcnt lgkmcnt(0)")
            out("s_sub_u32 s84, s84, s80")
            out("v_writelane_b32 v1, s84, 0")
        for gt in range(PF):
            dma(gt, -1)
        last = max(n for n, t in enumerate(vm_log) if t == 0)
        out("s_waitcnt vmcnt(%d)" % min(63, len(vm_log) - 1 - last))
        out("s_barrier")
        for j in range(NB):
            issue_reads(j)
        j = 0
        nitems = len(allitems)
        valu = []
        per = 0
        vsched = {}
        while j < nitems - NB:
            g, reads, mf = allitems[j]
            kind, idx, n = tiles[g]
            pos = j - tile_first[g]
            nti = tile_first[g + 1] - tile_first[g]
            if pos == 0:
                if n >= 0 and kind == "K" and idx == 0:
                    if n == NIT:
                        break
                    st["cur"] = "it%d" % n
                    sections[st["cur"]] = []
                site = (kind, idx, n < 0)
                out("; ---- tile %s%d" % (kind, idx))
                if E("PSTAMP") and n < 0:
                    out("s_memtime s[84:85]")
                    out("s_waitcnt lgkmcnt(0)")
                    out("s_sub_u32 s84, s84, s80")
                    out("v_writelane_b32 v1, s84, %d" % (idx + 1))
                if E("TSTAMP") and n >= 0:
                    ti = [i for i, t in enumerate(iter_tiles(0)) if t[0] == kind and t[1] == idx][0]
                    out("s_memtime s[84:85]")
                    out("s_waitcnt lgkmcnt(0)")
                    out("v_writelane_b32 v1, s84, %d" % ti)
                last = max(x for x, t in enumerate(vm_log) if t == g + 1)
                need = len(vm_log) - 1 - last
                measured.setdefault(site, []).append(need)
                w = site_min.get(site, need)
                out("s_waitcnt vmcnt(%d)" % min(63, w))
                out("s_barrier")
                vsched = {}
                step = nti // 4
                for q, pc in enumerate(dma_pieces(g + PF, n)):
                    vsched.setdefault(1 + step * q if step > 2 else step * q, []).append((pc, g + PF))
                kt = idx // 2
                newregion = True
                if n < 0:
                    valu, nit = [], 1
                elif kind == "K" and idx == 0:
                    valu = ["s_nop 7", "s_nop 7"] + epilogue_list(sOp)
                    nit = 30
                elif kind == "K" and idx == 1:
                    valu = valu + ["s_nop 3"] + max_part([0, 1])
                    nit = 15
                elif kind == "K" and idx % 2 == 1:
                    valu = ["s_nop 7"] + max_part([0, 1])
                    nit = 15
                elif kind == "K":
                    valu, nit = [], 1
                elif kind == "W" and idx % 4 == 0:
                    kt = idx // 4
                    valu = ["s_nop 7"] + max_part([2, 3]) + max_fin(kt) + exp_part(0, 32, resc_part() if kt > 0 else [])
                    nit = 31
                elif kind == "W":
                    newregion = False
                elif kind == "V" and idx % 2 == 0:
                    valu = exp_part(32, 64)
                    nit = 15
                else:
                    valu = sum_part(kt)
                    if idx == 7:
                        valu = merge(valu, qpack_list())
                    nit = 15
                if newregion:
                    per = (len(valu) + nit - 1) // nit
            lastl = max(x for x, t in enumerate(lg_log) if t == j)
            out("s_waitcnt lgkmcnt(%d)" % min(15, len(lg_log) - 1 - lastl))
            out(mf % ar(aF[j % NB], 4))
            issue_reads(j + NB)
            for (pc, tag) in vsched.get(pos, []):
                for x in pc:
                    out(x)
                vm_log.append(tag)
            for _ in range(per):
                if valu:
                    s = valu.pop(0)
                    out(s)
                    if s.startswith("buffer_"):
                        vm_log.append(-1)
            if pos == nti - 1:
                carry = n >= 0 and ((kind == "W" and idx % 4 != 3) or (kind == "K" and idx == 0))
                if not carry:
                    while valu:
                        s = valu.pop(0)
                        out(s)
                        if s.startswith("buffer_"):
                            vm_log.append(-1)
                    if n >= 0:
                        out("s_nop 1")
                if n < 0 and idx == 15:
                    out("s_nop 15")
                    for s in qpack_list():
                        out(s)
                    out("s_nop 1")
            j += 1
        return sections, measured

    sec, meas = simulate({})
    site_min = {k: min(v) for k, v in meas.items()}
    sec, meas2 = simulate(site_min)
    assert sec["it1"] == sec["it2"] == sec["it0"] == sec["it3"], "loop body not periodic"
    for s in sec["pro"]:
        a(s)
    a("s_mov_b32 %s, 1" % sr(sT[4]))
    set_kv(a, sKn, sVn, sT[4])
    cp4(a, sWc, sWn)
    cp4(a, sXc, sXn)
    a("s_mov_b32 %s, 2" % sr(sT[4]))
    set_wx(a, sWn, sXn, sT[4])
    a.label("attn_loop")
    if E("ISTAMP"):
        a("s_memtime s[84:85]")
        a("s_waitcnt lgkmcnt(0)")
        a("s_sub_u32 s84, s84, s80")
        a("s_add_u32 m0, %s, 1" % sr(sIter))
        a("s_nop 3")
        a("v_writelane_b32 v1, s84, m0")
    if E("WARM", "1") == "1":
        a("s_cmp_lg_u32 %s, 3" % sr(sIter))
        a("s_cbranch_scc1 attn_nowarm")
        a("s_cmp_lt_u32 s2, 128")
        a("s_cselect_b32 s92, s76, s78")
        a("s_cselect_b32 s93, s77, s79")
        a("s_mov_b32 s94, 4194304")
        a("s_mov_b32 s95, 0x20000")
        a("s_and_b32 s3, s2, 127")
        a("s_lshl_b32 s3, s3, 15")
        a("s_lshl_b32 s4, %s, 13" % sr(sWave))
        a("s_add_u32 s3, s3, s4")
        a("s_add_u32 s4, s3, 4096")
        for i in range(8):
            a("buffer_load_dwordx4 %s, %s, s[92:95], %s offen offset:%d" % (ar(112, 4), vr(vOoff), "s3" if i < 4 else "s4", 1024 * (i % 4)))
        a.label("attn_nowarm")
    for s in sec["it1"]:
        a(s)
    set_o(a, sOp, sIter)
    cp4(a, sKc, sKn)
    cp4(a, sVc, sVn)
    cp4(a, sWc, sWn)
    cp4(a, sXc, sXn)
    a("s_add_u32 %s, %s, 2" % (sr(sT[4]), sr(sIter)))
    set_kv(a, sKn, sVn, sT[4])
    a("s_add_u32 %s, %s, 3" % (sr(sT[4]), sr(sIter)))
    set_wx(a, sWn, sXn, sT[4])
    a("s_add_u32 %s, %s, 1" % (sr(sIter), sr(sIter)))
    a("s_cmp_lt_u32 %s, 4" % sr(sIter))
    a("s_cbranch_scc1 attn_loop")
    a("s_nop 15")
    for s in epilogue_list(sOp):
        a(s)
    if E("STAMP"):
        a("s_memtime s[84:85]")
        a("s_memrealtime s[86:87]")
        a("s_waitcnt lgkmcnt(0)")
        a("s_sub_u32 s84, s84, s80")
        a("s_sub_u32 s86, s86, s82")
        a("v_mov_b32 v4, s84")
        a("v_mov_b32 v5, s86")
        a("s_mov_b32 s90, 256")
        a("s_mov_b32 s91, 0x20000")
        a("v_mov_b32 v3, 0")
        a("s_cmp_eq_u32 s2, 8")
        a("s_cbranch_scc0 attn_done")
        a("buffer_store_dwordx2 v[4:5], v3, s[88:91], 0 offen")
        if E("TSTAMP") or E("ISTAMP") or E("PSTAMP"):
            a("v_lshlrev_b32 v3, 2, v0")
            a("v_add_u32 v3, 16, v3")
            a("buffer_store_dword v1, v3, s[88:91], 0 offen")
    a.label("attn_done")
    a("s_endpgm")


def kd2(name, vgpr, agpr, sgpr):
    return """.amdhsa_kernel %s
  .amdhsa_next_free_vgpr %d
  .amdhsa_next_free_sgpr %d
  .amdhsa_accum_offset %d
  .amdhsa_group_segment_fixed_size 0
  .amdhsa_kernarg_size 104
  .amdhsa_user_sgpr_count 2
  .amdhsa_user_sgpr_kernarg_segment_ptr 1
  .amdhsa_system_sgpr_workgroup_id_x 1
.end_amdhsa_kernel
""" % (name, vgpr + agpr, sgpr, vgpr)


def main():
    out = HEADER
    for name, fn in (("attn_kernel", gen_attn3), ("oproj_kernel", gen_oproj)):
        a = Asm()
        fn(a)
        out += ".globl %s\n.p2align 8\n.type %s,@function\n" % (name, name)
        out += a.text()
    out += '.section .rodata,"a"\n.p2align 6\n'
    out += kd2("attn_kernel", 256, 128, 96)
    out += ".p2align 6\n"
    out += kd("oproj_kernel", 248, 64)
    path = sys.argv[1] if len(sys.argv) > 1 else OUT
    open(path, "w").write(out)
    print("wrote", path, len(out))


if __name__ == "__main__":
    main()
```

```python
import os
from gen import vr, sr

E = os.environ.get
PART_OFF = 64 << 20
FLAG_OFF = 96 << 20


def ar(a, n=1):
    return "a%d" % a if n == 1 else "a[%d:%d]" % (a, a + n - 1)


def gen_oproj2(a):
    SLOT = 16384
    NSLOT = 8
    D = 7
    NB = 8
    sWo, sO, sOut, sPm, sPp, sFl = 8, 12, 16, 20, 24, 28
    sWave, sM0base, sOff, sBlk, sB, sN, sKh, sIt, sWb, sOb = 44, 45, 46, 47, 48, 49, 50, 51, 52, 53
    vWoff, vBoff = 2, 3
    vTrd = [list(range(4, 8)), list(range(8, 12))]
    vT = list(range(16, 24))
    vACC = 32
    vP = 96
    aF = [4 * i for i in range(NB)]
    aB = 32

    a.label("oproj_kernel")
    a("s_cmp_ge_u32 s2, 256")
    a("s_cbranch_scc1 oproj_done")
    if E("STAMP2"):
        a("s_memtime s[80:81]")
        a("s_load_dwordx2 s[88:89], s[0:1], 88")
    a("s_and_b32 s3, s2, 7")
    a("s_lshr_b32 s4, s2, 3")
    a("s_lshr_b32 %s, s3, 2" % sr(sBlk))
    a("s_and_b32 s5, s3, 3")
    a("s_lshl_b32 s5, s5, 2")
    a("s_lshr_b32 s6, s4, 3")
    a("s_add_u32 %s, s5, s6" % sr(sB))
    a("s_bfe_u32 %s, s4, 0x20001" % sr(sN))
    a("s_and_b32 %s, s4, 1" % sr(sKh))
    a("s_mul_i32 s3, %s, 40" % sr(sBlk))
    a("s_add_u32 s4, s0, s3")
    a("s_addc_u32 s5, s1, 0")
    a("s_load_dwordx2 s[56:57], s[4:5], 32")
    a("s_load_dwordx2 s[58:59], s[0:1], 80")
    a("s_load_dwordx2 s[60:61], s[0:1], 96")
    a("v_lshrrev_b32 v1, 6, v0")
    a("v_and_b32 v0, 63, v0")
    a("v_readfirstlane_b32 %s, v1" % sr(sWave))
    a("s_nop 3")
    a("s_lshl_b32 %s, %s, 12" % (sr(sM0base), sr(sWave)))
    rr, p = vT[0], vT[1]
    a("v_lshrrev_b32 %s, 4, v0" % vr(rr))
    a("v_and_b32 %s, 15, v0" % vr(p))
    a("s_lshl_b32 s3, %s, 4" % sr(sWave))
    a("v_add_u32 %s, s3, %s" % (vr(vT[2]), vr(rr)))
    a("v_lshlrev_b32 %s, 2, %s" % (vr(vT[3]), vr(rr)))
    a("v_xor_b32 %s, %s, %s" % (vr(vT[3]), vr(vT[3]), vr(p)))
    a("v_lshlrev_b32 %s, 4, %s" % (vr(vT[3]), vr(vT[3])))
    a("v_lshl_add_u32 %s, %s, 10, %s" % (vr(vWoff), vr(vT[2]), vr(vT[3])))
    a("v_lshlrev_b32 %s, 4, v0" % vr(vBoff))
    hh, r4, c4, mh, sw = vT[1], vT[0], vT[2], vT[3], vT[4]
    a("v_lshrrev_b32 %s, 5, v0" % vr(hh))
    a("v_bfe_u32 %s, v0, 2, 2" % vr(r4))
    a("v_and_b32 %s, 3, v0" % vr(c4))
    a("v_bfe_u32 %s, v0, 4, 1" % vr(mh))
    a("v_and_b32 %s, 1, %s" % (vr(sw), vr(c4)))
    a("v_lshlrev_b32 %s, 1, %s" % (vr(sw), vr(sw)))
    a("v_lshrrev_b32 %s, 1, %s" % (vr(vT[5]), vr(c4)))
    a("v_or_b32 %s, %s, %s" % (vr(sw), vr(sw), vr(vT[5])))
    a("v_lshl_add_u32 %s, %s, 3, %s" % (vr(vT[5]), vr(hh), vr(r4)))
    a("v_lshlrev_b32 %s, 8, %s" % (vr(vT[5]), vr(vT[5])))
    a("v_lshrrev_b32 %s, 1, %s" % (vr(vT[6]), vr(sw)))
    a("v_lshl_add_u32 %s, %s, 1, %s" % (vr(vT[6]), vr(mh), vr(vT[6])))
    a("v_lshl_add_u32 %s, %s, 4, %s" % (vr(vT[5]), vr(vT[6]), vr(vT[5])))
    a("v_and_b32 %s, 1, %s" % (vr(vT[6]), vr(sw)))
    a("v_lshl_add_u32 %s, %s, 3, %s" % (vr(vT[5]), vr(vT[6]), vr(vT[5])))
    for dt in range(4):
        a("v_xor_b32 %s, %d, %s" % (vr(vT[6]), dt, vr(r4)))
        a("v_lshl_add_u32 %s, %s, 6, %s" % (vr(vTrd[0][dt]), vr(vT[6]), vr(vT[5])))
        a("v_add_u32 %s, 0x10000, %s" % (vr(vTrd[1][dt]), vr(vTrd[0][dt])))
    for i in range(64):
        a("v_mov_b32 %s, 0" % vr(vACC + i))
    a("s_waitcnt lgkmcnt(0)")
    a("s_lshl_b32 s3, %s, 21" % sr(sKh))
    a("s_lshl_b32 s4, %s, 8" % sr(sN))
    a("s_add_u32 s3, s3, s4")
    a("s_add_u32 %s, s56, s3" % sr(sWo))
    a("s_addc_u32 %s, s57, 0" % sr(sWo + 1))
    a("s_sub_u32 %s, 4194304, s3" % sr(sWo + 2))
    a("s_mov_b32 %s, 0x20000" % sr(sWo + 3))
    a("s_lshl_b32 s3, %s, 6" % sr(sBlk))
    a("s_lshl_b32 s4, %s, 2" % sr(sB))
    a("s_add_u32 s3, s3, s4")
    a("s_add_u32 s3, s3, %s" % sr(sWave))
    a("s_lshl_b32 s3, s3, 18")
    a("s_lshl_b32 s4, %s, 17" % sr(sKh))
    a("s_add_u32 s3, s3, s4")
    a("s_add_u32 %s, s60, s3" % sr(sO))
    a("s_addc_u32 %s, s61, 0" % sr(sO + 1))
    a("s_mov_b32 %s, 131072" % sr(sO + 2))
    a("s_mov_b32 %s, 0x20000" % sr(sO + 3))
    a("s_lshl_b32 s3, %s, 7" % sr(sB))
    a("s_lshl_b32 s4, %s, 5" % sr(sWave))
    a("s_add_u32 s3, s3, s4")
    a("s_lshl_b32 s3, s3, 11")
    a("s_lshl_b32 s4, %s, 10" % sr(sBlk))
    a("s_add_u32 s3, s3, s4")
    a("s_lshl_b32 s4, %s, 8" % sr(sN))
    a("s_add_u32 s3, s3, s4")
    a("s_lshl_b32 s4, %s, 7" % sr(sKh))
    a("s_add_u32 s3, s3, s4")
    a("s_add_u32 %s, s58, s3" % sr(sOut))
    a("s_addc_u32 %s, s59, 0" % sr(sOut + 1))
    a("s_sub_u32 %s, 4194304, s3" % sr(sOut + 2))
    a("s_mov_b32 %s, 0x20000" % sr(sOut + 3))
    for srd, x in ((sPm, 0), (sPp, 8)):
        a("s_xor_b32 s3, s2, %d" % x)
        a("s_lshl_b32 s3, s3, 15")
        a("s_lshl_b32 s4, %s, 13" % sr(sWave))
        a("s_add_u32 s3, s3, s4")
        a("s_add_u32 s3, s3, 0x%x" % PART_OFF)
        a("s_add_u32 %s, s60, s3" % sr(srd))
        a("s_addc_u32 %s, s61, 0" % sr(srd + 1))
        a("s_mov_b32 %s, 8192" % sr(srd + 2))
        a("s_mov_b32 %s, 0x20000" % sr(srd + 3))
    a("s_add_u32 %s, s60, 0x%x" % (sr(sFl), FLAG_OFF))
    a("s_addc_u32 %s, s61, 0" % sr(sFl + 1))
    a("s_mov_b32 %s, 32768" % sr(sFl + 2))
    a("s_mov_b32 %s, 0x20000" % sr(sFl + 3))
    a("s_mov_b32 %s, 0" % sr(sWb))
    a("s_mov_b32 %s, 0" % sr(sOb))
    a("s_mov_b32 %s, 0" % sr(sIt))

    NIT = 4
    ntiles = 8 * (NIT + 2)

    def tile_items(g):
        slot = (g % NSLOT) * SLOT
        hi = 1 if slot >= 65536 else 0
        slot -= 65536 * hi
        items = []
        for ks in range(4):
            for nt in range(4):
                reads = [("ds_read_b64_tr_b16 %%s, %s offset:%d" % (vr(vTrd[hi][nt]), slot + (16 * ks + 4 * k) * 256), 2 * k) for k in range(2)]
                mf = "v_mfma_f32_32x32x16_bf16 %s, %%s, %s, %s" % (vr(vACC + 16 * nt, 16), ar(aB + 16 * (g % NSLOT) + 4 * ks, 4), vr(vACC + 16 * nt, 16))
                items.append((reads, mf))
        return items

    allitems = []
    for g in range(ntiles):
        for it in tile_items(g):
            allitems.append((g,) + it)

    def pieces(gt, cur_it):
        rel = gt - 8 * cur_it
        slot = (gt % NSLOT) * SLOT
        P = []
        for j in range(4):
            P.append(["s_add_u32 m0, %s, %d" % (sr(sM0base), slot + 1024 * j),
                      "s_add_u32 %s, %s, %d" % (sr(sOff), sr(sWb), rel * 65536 + j * 4096),
                      "buffer_load_dwordx4 %s, %s, %s offen lds" % (vr(vWoff), sr(sWo, 4), sr(sOff))])
            P.append(["s_add_u32 %s, %s, %d" % (sr(sOff), sr(sOb), rel * 4096),
                      "buffer_load_dwordx4 %s, %s, %s, %s offen offset:%d" % (ar(aB + 16 * (gt % NSLOT) + 4 * j, 4), vr(vBoff), sr(sO, 4), sr(sOff), 1024 * j)])
        return P

    def simulate(site_min):
        sections = {"pro": []}
        st = {"cur": "pro"}
        vm_log, lg_log, measured = [], [], {}

        def out(s):
            sections[st["cur"]].append(s)

        def issue_reads(j):
            g, reads, mf = allitems[j]
            f = aF[j % NB]
            for (txt, off) in reads:
                out(txt % ar(f + off, 2))
                lg_log.append(j)
        for gt in range(D):
            for pc in pieces(gt, 0):
                for x in pc:
                    out(x)
                vm_log.append(gt)
        last = max(n for n, t in enumerate(vm_log) if t == 0)
        out("s_waitcnt vmcnt(%d)" % min(63, len(vm_log) - 1 - last))
        out("s_barrier")
        for j in range(NB):
            issue_reads(j)
        for j in range(16 * 8 * NIT):
            g, reads, mf = allitems[j]
            pos = j % 16
            it = g // 8
            if pos == 0:
                if g % 8 == 0:
                    st["cur"] = "it%d" % it
                    sections[st["cur"]] = []
                site = g % 8
                last = max(x for x, t in enumerate(vm_log) if t == g + 1)
                need = len(vm_log) - 1 - last
                measured.setdefault(site, []).append(need)
                out("s_waitcnt vmcnt(%d)" % min(63, site_min.get(site, need)))
                out("s_barrier")
                pcs = pieces(g + D, it)
            lastl = max(x for x, t in enumerate(lg_log) if t == j)
            out("s_waitcnt lgkmcnt(%d)" % min(15, len(lg_log) - 1 - lastl))
            out(mf % ar(aF[j % NB], 4))
            issue_reads(j + NB)
            if pos % 2 == 1:
                for x in pcs[pos // 2]:
                    out(x)
                vm_log.append(g + D)
        return sections, measured

    sec, meas = simulate({})
    site_min = {k: min(v) for k, v in meas.items()}
    sec, _ = simulate(site_min)
    assert sec["it0"] == sec["it1"] == sec["it2"] == sec["it3"]
    for s in sec["pro"]:
        a(s)
    if E("STAMP2"):
        a("s_memtime s[82:83]")
        a("s_waitcnt lgkmcnt(0)")
    a.label("oproj_loop")
    for s in sec["it0"]:
        a(s)
    a("s_add_u32 %s, %s, %d" % (sr(sWb), sr(sWb), 8 * 65536))
    a("s_add_u32 %s, %s, %d" % (sr(sOb), sr(sOb), 8 * 4096))
    a("s_add_u32 %s, %s, 1" % (sr(sIt), sr(sIt)))
    a("s_cmp_lt_u32 %s, 4" % sr(sIt))
    a("s_cbranch_scc1 oproj_loop")
    a("s_nop 15")
    if E("STAMP2"):
        a("s_memtime s[84:85]")
    a("s_cmp_eq_u32 %s, 0" % sr(sKh))
    a("s_cbranch_scc1 oproj_send_hi")
    a("s_mov_b32 %s, 4096" % sr(sOff))
    for i in range(8):
        a("buffer_store_dwordx4 %s, %s, %s, %s offen offset:%d sc1" % (vr(vACC + 4 * i, 4), vr(vBoff), sr(sPm, 4), "0" if i < 4 else sr(sOff), 1024 * (i % 4)))
    a("s_nop 1")
    for i in range(32):
        a("v_mov_b32 %s, %s" % (vr(vACC + i), vr(vACC + 32 + i)))
    a("s_branch oproj_sent")
    a.label("oproj_send_hi")
    a("s_mov_b32 %s, 4096" % sr(sOff))
    for i in range(8):
        a("buffer_store_dwordx4 %s, %s, %s, %s offen offset:%d sc1" % (vr(vACC + 32 + 4 * i, 4), vr(vBoff), sr(sPm, 4), "0" if i < 4 else sr(sOff), 1024 * (i % 4)))
    a.label("oproj_sent")
    a("s_waitcnt vmcnt(0)")
    a("s_barrier")
    a("v_mov_b32 %s, 1" % vr(vT[0]))
    a("s_lshl_b32 s3, s2, 7")
    a("v_mov_b32 %s, s3" % vr(vT[1]))
    a("s_xor_b32 s4, s2, 8")
    a("s_lshl_b32 s4, s4, 7")
    a("v_mov_b32 %s, s4" % vr(vT[2]))
    a("s_cmp_lg_u32 %s, 0" % sr(sWave))
    a("s_cbranch_scc1 oproj_poll")
    a("s_mov_b64 exec, 1")
    a("buffer_store_dword %s, %s, %s, 0 offen sc1" % (vr(vT[0]), vr(vT[1]), sr(sFl, 4)))
    a("s_mov_b64 exec, -1")
    a.label("oproj_poll")
    a("s_mov_b32 s5, 0")
    a.label("oproj_poll_loop")
    a("buffer_load_dword %s, %s, %s, 0 offen sc1" % (vr(vT[3]), vr(vT[2]), sr(sFl, 4)))
    a("s_waitcnt vmcnt(0)")
    a("v_readfirstlane_b32 s3, %s" % vr(vT[3]))
    a("s_add_u32 s5, s5, 1")
    a("s_cmp_eq_u32 s3, 1")
    a("s_cbranch_scc1 oproj_got")
    a("s_sleep 1")
    a("s_cmp_lt_u32 s5, 0x40000")
    a("s_cbranch_scc1 oproj_poll_loop")
    a.label("oproj_got")
    a("s_mov_b32 %s, 4096" % sr(sOff))
    for i in range(8):
        a("buffer_load_dwordx4 %s, %s, %s, %s offen offset:%d sc1" % (vr(vP + 4 * i, 4), vr(vBoff), sr(sPp, 4), "0" if i < 4 else sr(sOff), 1024 * (i % 4)))
    a("v_and_b32 %s, 31, v0" % vr(vT[0]))
    a("v_lshrrev_b32 %s, 5, v0" % vr(vT[1]))
    a("v_lshlrev_b32 %s, 11, %s" % (vr(vT[0]), vr(vT[0])))
    a("v_lshl_add_u32 %s, %s, 4, %s" % (vr(vT[0]), vr(vT[1]), vr(vT[0])))
    a("s_waitcnt vmcnt(0)")
    for i in range(32):
        a("v_add_f32 %s, %s, %s" % (vr(vACC + i), vr(vACC + i), vr(vP + i)))
    for i in range(16):
        a("v_cvt_pk_bf16_f32 %s, %s, %s" % (vr(vP + i), vr(vACC + 2 * i), vr(vACC + 2 * i + 1)))
    for T in range(4):
        a("buffer_store_dwordx4 %s, %s, %s, 0 offen offset:%d" % (vr(vP + 4 * T, 4), vr(vT[0]), sr(sOut, 4), 32 * T))
    if E("STAMP2"):
        a("s_memtime s[86:87]")
        a("s_waitcnt lgkmcnt(0)")
        a("s_sub_u32 s82, s82, s80")
        a("s_sub_u32 s84, s84, s80")
        a("s_sub_u32 s86, s86, s80")
        a("v_mov_b32 v4, s82")
        a("v_mov_b32 v5, s84")
        a("v_mov_b32 v6, s86")
        a("v_mov_b32 v7, 0")
        a("s_mov_b32 s90, 256")
        a("s_mov_b32 s91, 0x20000")
        a("v_mov_b32 v3, 0")
        a("s_cmp_eq_u32 s2, 8")
        a("s_cbranch_scc0 oproj_done")
        a("buffer_store_dwordx4 v[4:7], v3, s[88:91], 0 offen")
    a.label("oproj_done")
    a("s_endpgm")
```

```python
import sys, os
import gen as g1
from gen import Asm, vr, sr, f32bits, SCALE_LOG2E, kd, NAME, OUT, gen_oproj
from gen_op2 import gen_oproj2, FLAG_OFF

KVFLAG = os.environ.get("KVFLAG", " nt")
STFLAG = os.environ.get("STFLAG", " sc1")
E = os.environ.get


def ar(a, n=1):
    return "a%d" % a if n == 1 else "a[%d:%d]" % (a, a + n - 1)


HEADER = g1.HEADER.split("; @launch")[0] + """; @launch kernel=attn_kernel grid=(256,1,1) block=(256,1,1) lds=131072
; @launch kernel=oproj_kernel grid=(256,1,1) block=(256,1,1) lds=131072
.amdgcn_target "amdgcn-amd-amdhsa--gfx950"
.text
"""


def gen_attn3(a):
    SLOT = 16384
    NSLOT = 8
    PF = NSLOT - 1
    NB = 8
    NXB = 4
    sKc, sVc, sKn, sVn, sWc, sWn, sXc, sXn, sOp = 8, 12, 16, 20, 24, 28, 32, 36, 40
    sWave, sM0base, sC, sOff, sIter, sH, sJ4, sM0b2 = 44, 45, 46, 47, 48, 49, 50, 74
    sT = list(range(51, 56))
    sPA, sPB_, sWs = 56, 64, 72
    vKoff = [2, 3, 4, 5]
    vVoff, vWoff = 6, 7
    vKrd = [list(range(8, 16)), list(range(16, 24))]
    vTrd = [list(range(24, 28)), list(range(28, 32))]
    vXoff, vOoff = 32, 33
    vM, vL, vAlpha = 34, 35, 36
    vT = list(range(40, 48))
    vACC = 48
    vS = 112
    vPB = 176
    vQB = 208
    vQT = 240
    vET = 248
    vXrd = [[250, 251], [252, 253]]
    aQ = 0
    aF = [64 + 4 * i for i in range(NB)]
    aXB = [96 + 4 * i for i in range(NXB)]

    a.label("attn_kernel")
    a("s_cmp_ge_u32 s2, 256")
    a("s_cbranch_scc1 attn_done")
    if E("STAMP"):
        a("s_memtime s[80:81]")
        a("s_memrealtime s[82:83]")
        a("s_load_dwordx2 s[88:89], s[0:1], 88")
    a("s_load_dwordx8 s[%d:%d], s[0:1], 0" % (sPA, sPA + 7))
    a("s_load_dwordx8 s[%d:%d], s[0:1], 40" % (sPB_, sPB_ + 7))
    a("s_load_dwordx2 s[%d:%d], s[0:1], 96" % (sWs, sWs + 1))
    a("s_load_dwordx2 s[76:77], s[0:1], 32")
    a("s_load_dwordx2 s[78:79], s[0:1], 72")
    a("s_and_b32 s3, s2, 7")
    a("s_lshr_b32 s4, s2, 3")
    a("s_and_b32 s5, s4, 3")
    a("s_lshl_b32 s5, s5, 3")
    a("s_add_u32 %s, s3, s5" % sr(sH))
    a("s_lshr_b32 %s, s4, 2" % sr(sJ4))
    a("v_lshrrev_b32 v1, 6, v0")
    a("v_and_b32 v0, 63, v0")
    a("v_readfirstlane_b32 %s, v1" % sr(sWave))
    a("s_mov_b32 %s, 0x%08x" % (sr(sC), f32bits(SCALE_LOG2E)))
    a("s_lshl_b32 %s, %s, 12" % (sr(sM0base), sr(sWave)))
    a("s_lshl_b32 %s, %s, 11" % (sr(sM0b2), sr(sWave)))
    rr, p = vT[0], vT[1]
    a("v_lshrrev_b32 %s, 4, v0" % vr(rr))
    a("v_and_b32 %s, 15, v0" % vr(p))
    a("s_lshl_b32 s3, %s, 4" % sr(sWave))
    a("v_add_u32 %s, s3, %s" % (vr(vT[2]), vr(rr)))
    for j in range(4):
        a("v_add_u32 %s, %d, %s" % (vr(vT[3]), 4 * j, vr(rr)))
        a("v_xor_b32 %s, %s, %s" % (vr(vT[3]), vr(vT[3]), vr(p)))
        a("v_lshlrev_b32 %s, 4, %s" % (vr(vT[3]), vr(vT[3])))
        a("v_lshl_add_u32 %s, %s, 8, %s" % (vr(vKoff[j]), vr(vT[2]), vr(vT[3])))
    a("v_lshlrev_b32 %s, 2, %s" % (vr(vT[3]), vr(rr)))
    a("v_xor_b32 %s, %s, %s" % (vr(vT[3]), vr(vT[3]), vr(p)))
    a("v_lshlrev_b32 %s, 4, %s" % (vr(vT[3]), vr(vT[3])))
    a("v_lshl_add_u32 %s, %s, 8, %s" % (vr(vVoff), vr(vT[2]), vr(vT[3])))
    a("s_lshl_b32 s3, %s, 3" % sr(sWave))
    a("v_add_u32 %s, s3, %s" % (vr(vT[2]), vr(rr)))
    a("v_lshl_add_u32 %s, %s, 13, %s" % (vr(vWoff), vr(vT[2]), vr(vT[3])))
    a("v_lshrrev_b32 %s, 2, v0" % vr(vT[2]))
    a("s_lshl_b32 s3, %s, 5" % sr(sWave))
    a("v_add_u32 %s, s3, %s" % (vr(vT[2]), vr(vT[2])))
    a("v_and_b32 %s, 3, v0" % vr(vT[3]))
    a("v_xor_b32 %s, %s, %s" % (vr(vT[3]), vr(vT[3]), vr(rr)))
    a("v_lshlrev_b32 %s, 4, %s" % (vr(vT[3]), vr(vT[3])))
    a("v_lshl_add_u32 %s, %s, 10, %s" % (vr(vXoff), vr(vT[2]), vr(vT[3])))
    r, hh, pr = vT[0], vT[1], vT[2]
    a("v_and_b32 %s, 31, v0" % vr(r))
    a("v_lshrrev_b32 %s, 5, v0" % vr(hh))
    a("v_and_b32 %s, 0x13, %s" % (vr(pr), vr(r)))
    a("v_and_b32 %s, 4, %s" % (vr(vT[3]), vr(r)))
    a("v_lshl_or_b32 %s, %s, 1, %s" % (vr(pr), vr(vT[3]), vr(pr)))
    a("v_and_b32 %s, 8, %s" % (vr(vT[3]), vr(r)))
    a("v_lshrrev_b32 %s, 1, %s" % (vr(vT[3]), vr(vT[3])))
    a("v_or_b32 %s, %s, %s" % (vr(pr), vr(pr), vr(vT[3])))
    a("v_and_b32 %s, 15, %s" % (vr(vT[4]), vr(pr)))
    for t in range(8):
        a("v_add_u32 %s, %d, %s" % (vr(vT[3]), 2 * t, vr(hh)))
        a("v_xor_b32 %s, %s, %s" % (vr(vT[3]), vr(vT[3]), vr(vT[4])))
        a("v_lshlrev_b32 %s, 4, %s" % (vr(vT[3]), vr(vT[3])))
        a("v_lshl_add_u32 %s, %s, 8, %s" % (vr(vKrd[0][t]), vr(pr), vr(vT[3])))
        a("v_add_u32 %s, 0x10000, %s" % (vr(vKrd[1][t]), vr(vKrd[0][t])))
    a("s_lshl_b32 s3, %s, 5" % sr(sWave))
    a("v_add_u32 %s, s3, %s" % (vr(vT[3]), vr(r)))
    a("v_lshlrev_b32 %s, 6, %s" % (vr(vT[3]), vr(vT[3])))
    a("v_add_u32 %s, 0x2000, %s" % (vr(vT[3]), vr(vT[3])))
    a("v_bfe_u32 %s, %s, 2, 2" % (vr(vT[4]), vr(r)))
    for ks in range(2):
        a("v_add_u32 %s, %d, %s" % (vr(vT[5]), 2 * ks, vr(hh)))
        a("v_xor_b32 %s, %s, %s" % (vr(vT[5]), vr(vT[5]), vr(vT[4])))
        a("v_lshl_add_u32 %s, %s, 4, %s" % (vr(vXrd[0][ks]), vr(vT[5]), vr(vT[3])))
        a("v_add_u32 %s, 0x10000, %s" % (vr(vXrd[1][ks]), vr(vXrd[0][ks])))
    a("v_lshlrev_b32 %s, 4, v0" % vr(vOoff))
    r4, c4, mh, sw = vT[0], vT[2], vT[3], vT[4]
    a("v_bfe_u32 %s, v0, 2, 2" % vr(r4))
    a("v_and_b32 %s, 3, v0" % vr(c4))
    a("v_bfe_u32 %s, v0, 4, 1" % vr(mh))
    a("v_and_b32 %s, 1, %s" % (vr(sw), vr(c4)))
    a("v_lshlrev_b32 %s, 1, %s" % (vr(sw), vr(sw)))
    a("v_lshrrev_b32 %s, 1, %s" % (vr(vT[5]), vr(c4)))
    a("v_or_b32 %s, %s, %s" % (vr(sw), vr(sw), vr(vT[5])))
    a("v_lshl_add_u32 %s, %s, 3, %s" % (vr(vT[5]), vr(hh), vr(r4)))
    a("v_lshlrev_b32 %s, 8, %s" % (vr(vT[5]), vr(vT[5])))
    a("v_lshrrev_b32 %s, 1, %s" % (vr(vT[6]), vr(sw)))
    a("v_lshl_add_u32 %s, %s, 1, %s" % (vr(vT[6]), vr(mh), vr(vT[6])))
    a("v_lshl_add_u32 %s, %s, 4, %s" % (vr(vT[5]), vr(vT[6]), vr(vT[5])))
    a("v_and_b32 %s, 1, %s" % (vr(vT[6]), vr(sw)))
    a("v_lshl_add_u32 %s, %s, 3, %s" % (vr(vT[5]), vr(vT[6]), vr(vT[5])))
    for dt in range(4):
        a("v_xor_b32 %s, %d, %s" % (vr(vT[6]), dt, vr(r4)))
        a("v_lshl_add_u32 %s, %s, 6, %s" % (vr(vTrd[0][dt]), vr(vT[6]), vr(vT[5])))
        a("v_add_u32 %s, 0x10000, %s" % (vr(vTrd[1][dt]), vr(vTrd[0][dt])))
    a("s_waitcnt lgkmcnt(0)")

    def task_params(o, sR):
        o("s_and_b32 %s, %s, 1" % (sr(sT[1]), sr(sR)))
        o("s_lshl_b32 %s, %s, 3" % (sr(sT[1]), sr(sT[1])))
        o("s_add_u32 %s, %s, %s" % (sr(sT[1]), sr(sT[1]), sr(sJ4)))
        o("s_lshr_b32 %s, %s, 1" % (sr(sT[0]), sr(sR)))

    def sel_ptr(o, dst, idx):
        o("s_cmp_eq_u32 %s, 0" % sr(sT[0]))
        o("s_cselect_b32 %s, %s, %s" % (sr(dst), sr(sPA + 2 * idx), sr(sPB_ + 2 * idx)))
        o("s_cselect_b32 %s, %s, %s" % (sr(dst + 1), sr(sPA + 2 * idx + 1), sr(sPB_ + 2 * idx + 1)))

    def set_kv(o, sK, sV, sR):
        task_params(o, sR)
        o("s_lshl_b32 %s, %s, 5" % (sr(sT[2]), sr(sT[1])))
        o("s_add_u32 %s, %s, %s" % (sr(sT[2]), sr(sT[2]), sr(sH)))
        o("s_lshl_b32 %s, %s, 17" % (sr(sT[2]), sr(sT[2])))
        for srd, idx in ((sK, 1), (sV, 2)):
            sel_ptr(o, srd, idx)
            o("s_add_u32 %s, %s, %s" % (sr(srd), sr(srd), sr(sT[2])))
            o("s_addc_u32 %s, %s, 0" % (sr(srd + 1), sr(srd + 1)))
            o("s_cmp_lt_u32 %s, 2" % sr(sT[0]))
            o("s_cselect_b32 %s, 131072, 0" % sr(srd + 2))
            o("s_mov_b32 %s, 0x20000" % sr(srd + 3))

    def set_wx(o, sW, sX, sR):
        task_params(o, sR)
        sel_ptr(o, sW, 3)
        o("s_lshl_b32 %s, %s, 8" % (sr(sT[2]), sr(sH)))
        o("s_add_u32 %s, %s, %s" % (sr(sW), sr(sW), sr(sT[2])))
        o("s_addc_u32 %s, %s, 0" % (sr(sW + 1), sr(sW + 1)))
        o("s_sub_u32 %s, 4194304, %s" % (sr(sT[2]), sr(sT[2])))
        o("s_cmp_lt_u32 %s, 2" % sr(sT[0]))
        o("s_cselect_b32 %s, %s, 0" % (sr(sW + 2), sr(sT[2])))
        o("s_mov_b32 %s, 0x20000" % sr(sW + 3))
        sel_ptr(o, sX, 0)
        o("s_lshl_b32 %s, %s, 17" % (sr(sT[2]), sr(sT[1])))
        o("s_add_u32 %s, %s, %s" % (sr(sX), sr(sX), sr(sT[2])))
        o("s_addc_u32 %s, %s, 0" % (sr(sX + 1), sr(sX + 1)))
        o("s_cmp_lt_u32 %s, 2" % sr(sT[0]))
        o("s_cselect_b32 %s, 131072, 0" % sr(sX + 2))
        o("s_mov_b32 %s, 0x20000" % sr(sX + 3))

    def set_o(o, sO, sR, valid=True):
        task_params(o, sR)
        o("s_lshl_b32 %s, %s, 6" % (sr(sT[2]), sr(sT[0])))
        o("s_lshl_b32 %s, %s, 2" % (sr(sT[3]), sr(sT[1])))
        o("s_add_u32 %s, %s, %s" % (sr(sT[2]), sr(sT[2]), sr(sT[3])))
        o("s_add_u32 %s, %s, %s" % (sr(sT[2]), sr(sT[2]), sr(sWave)))
        o("s_lshl_b32 %s, %s, 8" % (sr(sT[2]), sr(sT[2])))
        o("s_lshl_b32 %s, %s, 3" % (sr(sT[3]), sr(sH)))
        o("s_add_u32 %s, %s, %s" % (sr(sT[2]), sr(sT[2]), sr(sT[3])))
        o("s_lshl_b32 %s, %s, 10" % (sr(sT[2]), sr(sT[2])))
        o("s_add_u32 %s, %s, %s" % (sr(sO), sr(sWs), sr(sT[2])))
        o("s_addc_u32 %s, %s, 0" % (sr(sO + 1), sr(sWs + 1)))
        o("s_mov_b32 %s, %d" % (sr(sO + 2), 8192 if valid else 0))
        o("s_mov_b32 %s, 0x20000" % sr(sO + 3))

    def cp4(o, d, s):
        o("s_mov_b64 %s, %s" % (sr(d, 2), sr(s, 2)))
        o("s_mov_b64 %s, %s" % (sr(d + 2, 2), sr(s + 2, 2)))

    a("s_add_u32 s92, %s, 0x%x" % (sr(sWs), FLAG_OFF))
    a("s_addc_u32 s93, %s, 0" % sr(sWs + 1))
    a("s_mov_b32 s94, 32768")
    a("s_mov_b32 s95, 0x20000")
    a("s_lshl_b32 s3, s2, 7")
    a("v_mov_b32 %s, 0" % vr(vT[0]))
    a("v_lshlrev_b32 %s, 2, v0" % vr(vT[1]))
    a("v_add_u32 %s, s3, %s" % (vr(vT[1]), vr(vT[1])))
    a("v_cmp_gt_u32 vcc, 32, v0")
    a("s_and_saveexec_b64 s[4:5], vcc")
    a("buffer_store_dword %s, %s, s[92:95], 0 offen" % (vr(vT[0]), vr(vT[1])))
    a("s_mov_b64 exec, s[4:5]")
    a("s_mov_b32 %s, 0" % sr(sIter))
    a("s_mov_b32 %s, 0" % sr(sT[4]))
    set_wx(a, sWc, sXc, sT[4])
    set_kv(a, sKn, sVn, sT[4])
    set_kv(a, sKc, sVc, sT[4])
    set_o(a, sOp, sT[4], valid=False)
    a("s_mov_b32 %s, 1" % sr(sT[4]))
    set_wx(a, sWn, sXn, sT[4])

    def iter_tiles(n):
        t = []
        for kt in range(4):
            t += [("K", 2 * kt, n), ("K", 2 * kt + 1, n)] + [("W", 4 * kt + i, n) for i in range(4)] + [("V", 2 * kt, n), ("V", 2 * kt + 1, n)]
        return t
    NIT = 4
    tiles = [("W", i, -1) for i in range(16)]
    for n in range(NIT + 1):
        tiles += iter_tiles(n)

    ch = vT[0:4]
    mc = vT[4]

    def max_part(cs):
        L = []
        for c in cs:
            L.append("v_max3_f32 %s, %s, %s, %s" % (vr(ch[c]), vr(vS + 16 * c), vr(vS + 16 * c + 1), vr(vS + 16 * c + 2)))
        for k in range(3, 15, 2):
            for c in cs:
                L.append("v_max3_f32 %s, %s, %s, %s" % (vr(ch[c]), vr(ch[c]), vr(vS + 16 * c + k), vr(vS + 16 * c + k + 1)))
        for c in cs:
            L.append("v_max_f32 %s, %s, %s" % (vr(ch[c]), vr(ch[c]), vr(vS + 16 * c + 15)))
        return L

    def max_fin(kt):
        L = []
        L.append("v_max3_f32 %s, %s, %s, %s" % (vr(ch[0]), vr(ch[0]), vr(ch[1]), vr(ch[2])))
        L.append("v_max_f32 %s, %s, %s" % (vr(ch[0]), vr(ch[0]), vr(ch[3])))
        L.append("v_mov_b32 %s, %s" % (vr(ch[1]), vr(ch[0])))
        L.append("s_nop 1")
        L.append("v_permlane32_swap_b32 %s, %s" % (vr(ch[0]), vr(ch[1])))
        L.append("s_nop 1")
        if kt == 0:
            L.append("v_max_f32 %s, %s, %s" % (vr(vM), vr(ch[0]), vr(ch[1])))
        else:
            L.append("v_max3_f32 %s, %s, %s, %s" % (vr(ch[2]), vr(ch[0]), vr(ch[1]), vr(vM)))
            L.append("v_sub_f32 %s, %s, %s" % (vr(ch[3]), vr(vM), vr(ch[2])))
            L.append("v_mul_f32 %s, %s, %s" % (vr(ch[3]), sr(sC), vr(ch[3])))
            L.append("v_exp_f32 %s, %s" % (vr(vAlpha), vr(ch[3])))
            L.append("v_mov_b32 %s, %s" % (vr(vM), vr(ch[2])))
        L.append("v_mul_f32 %s, %s, %s" % (vr(mc), sr(sC), vr(vM)))
        return L

    def exp_part(lo, hi, extra=()):
        L = []
        extra = list(extra)
        ng = (hi - lo) // 4
        for gi in range(ng):
            b = lo + 4 * gi
            for i in range(b, b + 4):
                L.append("v_fma_f32 %s, %s, %s, -%s" % (vr(vS + i), vr(vS + i), sr(sC), vr(mc)))
            for i in range(b, b + 4):
                L.append("v_exp_f32 %s, %s" % (vr(vS + i), vr(vS + i)))
            k = len(extra) // ng
            L += extra[gi * k:(gi + 1) * k]
            if gi > 0:
                for i in range(b - 4, b, 2):
                    L.append("v_cvt_pk_bf16_f32 %s, %s, %s" % (vr(vPB + i // 2), vr(vS + i), vr(vS + i + 1)))
        L.append("s_nop 0")
        for i in range(hi - 4, hi, 2):
            L.append("v_cvt_pk_bf16_f32 %s, %s, %s" % (vr(vPB + i // 2), vr(vS + i), vr(vS + i + 1)))
        return L

    def resc_part():
        return ["v_mul_f32 %s, %s, %s" % (vr(vACC + i), vr(vAlpha), vr(vACC + i)) for i in range(64)]

    def sum_part(kt):
        L = []
        for c in range(4):
            L.append("v_add_f32 %s, %s, %s" % (vr(ch[c]), vr(vS + 16 * c), vr(vS + 16 * c + 1)))
        for k in range(2, 16):
            for c in range(4):
                L.append("v_add_f32 %s, %s, %s" % (vr(ch[c]), vr(ch[c]), vr(vS + 16 * c + k)))
        L.append("v_add_f32 %s, %s, %s" % (vr(ch[0]), vr(ch[0]), vr(ch[1])))
        L.append("v_add_f32 %s, %s, %s" % (vr(ch[2]), vr(ch[2]), vr(ch[3])))
        L.append("v_add_f32 %s, %s, %s" % (vr(ch[0]), vr(ch[0]), vr(ch[2])))
        if kt == 0:
            L.append("v_mov_b32 %s, %s" % (vr(vL), vr(ch[0])))
        else:
            L.append("v_fma_f32 %s, %s, %s, %s" % (vr(vL), vr(vL), vr(vAlpha), vr(ch[0])))
        return L

    def merge(A, B):
        out, ia, ib = [], 0, 0
        while ia < len(A) or ib < len(B):
            if ib >= len(B) or (ia < len(A) and ia * len(B) <= ib * len(A)):
                out.append(A[ia]); ia += 1
            else:
                out.append(B[ib]); ib += 1
        return out

    def qpack_list():
        L = []
        for T in range(8):
            dt, t = T // 2, T % 2
            for e in range(8):
                L.append("v_accvgpr_read_b32 %s, %s" % (vr(vQT + e), ar(aQ + 16 * dt + 8 * t + e)))
            for jj in range(4):
                L.append("v_cvt_pk_bf16_f32 %s, %s, %s" % (vr(vQB + 4 * T + jj), vr(vQT + 2 * jj), vr(vQT + 2 * jj + 1)))
        return L

    def epilogue_list(sO):
        L = []
        L.append("v_mov_b32 %s, %s" % (vr(vET), vr(vL)))
        L.append("s_nop 1")
        L.append("v_permlane32_swap_b32 %s, %s" % (vr(vL), vr(vET)))
        L.append("s_nop 1")
        L.append("v_add_f32 %s, %s, %s" % (vr(vL), vr(vL), vr(vET)))
        L.append("v_rcp_f32 %s, %s" % (vr(vL), vr(vL)))
        L.append("s_nop 0")
        for T in range(8):
            for i in range(8 * T, 8 * T + 8):
                L.append("v_mul_f32 %s, %s, %s" % (vr(vACC + i), vr(vL), vr(vACC + i)))
            for i in range(4 * T, 4 * T + 4):
                L.append("v_cvt_pk_bf16_f32 %s, %s, %s" % (vr(vPB + i), vr(vACC + 2 * i), vr(vACC + 2 * i + 1)))
            if T == 4:
                L.append("s_mov_b32 %s, 4096" % sr(sT[0]))
            L.append("buffer_store_dwordx4 %s, %s, %s, %s offen offset:%d%s" % (vr(vPB + 4 * T, 4), vr(vOoff), sr(sO, 4), "0" if T < 4 else sr(sT[0]), 1024 * (T % 4), STFLAG))
        return L

    def tile_items(g):
        kind, idx, n = tiles[g]
        slot = (g % NSLOT) * SLOT
        hi = 1 if slot >= 65536 else 0
        slot -= 65536 * hi
        items = []
        if kind == "W":
            for ks in range(2):
                gk = 2 * idx + ks
                xb = aXB[gk % NXB]
                for dt in range(4):
                    reads = [("ds_read_b64_tr_b16 %%s, %s offset:%d" % (vr(vTrd[hi][dt]), slot + (16 * ks + 4 * k) * 256), 2 * k, 2) for k in range(2)]
                    if dt == 0:
                        reads.append(("ds_read_b128 %s, %s offset:%d" % (ar(xb, 4), vr(vXrd[hi][ks]), slot), None, 0))
                    c = "0" if gk == 0 else ar(aQ + 16 * dt, 16)
                    mf = "v_mfma_f32_32x32x16_bf16 %s, %%s, %s, %s" % (ar(aQ + 16 * dt, 16), ar(xb, 4), c)
                    items.append((reads, mf))
        elif kind == "K":
            half = idx % 2
            for sub in range(2):
                for T in range(8):
                    st = vS + 16 * (2 * half + sub)
                    reads = [("ds_read_b128 %%s, %s offset:%d" % (vr(vKrd[hi][T]), slot + sub * 8192), 0, 4)]
                    c = "0" if T == 0 else vr(st, 16)
                    mf = "v_mfma_f32_32x32x16_bf16 %s, %%s, %s, %s" % (vr(st, 16), vr(vQB + 4 * T, 4), c)
                    items.append((reads, mf))
        else:
            half = idx % 2
            for sub in range(2):
                for tp in range(2):
                    kst = 4 * half + 2 * sub + tp
                    for dt in range(4):
                        reads = [("ds_read_b64_tr_b16 %%s, %s offset:%d" % (vr(vTrd[hi][dt]), slot + (32 * sub + 16 * tp + 4 * k) * 256), 2 * k, 2) for k in range(2)]
                        c = "0" if (idx == 0 and kst == 0) else vr(vACC + 16 * dt, 16)
                        mf = "v_mfma_f32_32x32x16_bf16 %s, %%s, %s, %s" % (vr(vACC + 16 * dt, 16), vr(vPB + 4 * kst, 4), c)
                        items.append((reads, mf))
        return items

    allitems = []
    tile_first = {}
    for g in range(len(tiles)):
        tile_first[g] = len(allitems)
        for (reads, mf) in tile_items(g):
            allitems.append((g, reads, mf))

    def simulate(site_min):
        sections = {}
        st = {"cur": "pro"}
        sections["pro"] = []
        vm_log = []
        lg_log = []
        measured = {}

        def out(s):
            sections[st["cur"]].append(s)

        def dma_pieces(gt, cur_iter):
            kind, idx, n = tiles[gt]
            slot = (gt % NSLOT) * SLOT
            nxt = n != cur_iter
            P = []
            for j in range(4):
                if kind == "W":
                    if j < 2:
                        P.append(["s_add_u32 m0, %s, %d" % (sr(sM0b2), slot + 1024 * j),
                                  "s_mov_b32 %s, %d" % (sr(sOff), idx * 32 * 8192 + j * 32768),
                                  "buffer_load_dwordx4 %s, %s, %s offen lds" % (vr(vWoff), sr(sWn if nxt else sWc, 4), sr(sOff))])
                    else:
                        P.append(["s_add_u32 m0, %s, %d" % (sr(sM0b2), slot + 8192 + 1024 * (j - 2)),
                                  "s_mov_b32 %s, %d" % (sr(sOff), idx * 64 + (j - 2) * 16384),
                                  "buffer_load_dwordx4 %s, %s, %s offen lds" % (vr(vXoff), sr(sXn if nxt else sXc, 4), sr(sOff))])
                elif kind == "K":
                    P.append(["s_add_u32 m0, %s, %d" % (sr(sM0base), slot),
                              "s_mov_b32 %s, %d" % (sr(sOff), idx * 16384),
                              "buffer_load_dwordx4 %s, %s, %s offen offset:%d%s lds" % (vr(vKoff[j]), sr(sKn if nxt else sKc, 4), sr(sOff), 1024 * j, KVFLAG)])
                else:
                    P.append(["s_add_u32 m0, %s, %d" % (sr(sM0base), slot),
                              "s_mov_b32 %s, %d" % (sr(sOff), idx * 16384),
                              "buffer_load_dwordx4 %s, %s, %s offen offset:%d%s lds" % (vr(vVoff), sr(sVn if nxt else sVc, 4), sr(sOff), 1024 * j, KVFLAG)])
            return P

        def dma(gt, cur_iter):
            for piece in dma_pieces(gt, cur_iter):
                for x in piece:
                    out(x)
                vm_log.append(gt)

        def issue_reads(j):
            g, reads, mf = allitems[j]
            f = aF[j % NB]
            for (txt, off, n) in reads:
                out(txt if off is None else txt % ar(f + off, n))
                lg_log.append(j)

        if E("PSTAMP"):
            out("s_memtime s[84:85]")
            out("s_waitcnt lgkmcnt(0)")
            out("s_sub_u32 s84, s84, s80")
            out("v_writelane_b32 v1, s84, 0")
        for gt in range(PF):
            dma(gt, -1)
        last = max(n for n, t in enumerate(vm_log) if t == 0)
        out("s_waitcnt vmcnt(%d)" % min(63, len(vm_log) - 1 - last))
        out("s_barrier")
        for j in range(NB):
            issue_reads(j)
        j = 0
        nitems = len(allitems)
        valu = []
        per = 0
        vsched = {}
        while j < nitems - NB:
            g, reads, mf = allitems[j]
            kind, idx, n = tiles[g]
            pos = j - tile_first[g]
            nti = tile_first[g + 1] - tile_first[g]
            if pos == 0:
                if n >= 0 and kind == "K" and idx == 0:
                    if n == NIT:
                        break
                    st["cur"] = "it%d" % n
                    sections[st["cur"]] = []
                site = (kind, idx, n < 0)
                out("; ---- tile %s%d" % (kind, idx))
                if E("PSTAMP") and n < 0:
                    out("s_memtime s[84:85]")
                    out("s_waitcnt lgkmcnt(0)")
                    out("s_sub_u32 s84, s84, s80")
                    out("v_writelane_b32 v1, s84, %d" % (idx + 1))
                if E("TSTAMP") and n >= 0:
                    ti = [i for i, t in enumerate(iter_tiles(0)) if t[0] == kind and t[1] == idx][0]
                    out("s_memtime s[84:85]")
                    out("s_waitcnt lgkmcnt(0)")
                    out("v_writelane_b32 v1, s84, %d" % ti)
                last = max(x for x, t in enumerate(vm_log) if t == g + 1)
                need = len(vm_log) - 1 - last
                measured.setdefault(site, []).append(need)
                w = site_min.get(site, need)
                out("s_waitcnt vmcnt(%d)" % min(63, w))
                out("s_barrier")
                vsched = {}
                step = nti // 4
                for q, pc in enumerate(dma_pieces(g + PF, n)):
                    vsched.setdefault(1 + step * q if step > 2 else step * q, []).append((pc, g + PF))
                kt = idx // 2
                newregion = True
                if n < 0:
                    valu, nit = [], 1
                elif kind == "K" and idx == 0:
                    valu = ["s_nop 7", "s_nop 7"] + epilogue_list(sOp)
                    nit = 30
                elif kind == "K" and idx == 1:
                    valu = valu + ["s_nop 3"] + max_part([0, 1])
                    nit = 15
                elif kind == "K" and idx % 2 == 1:
                    valu = ["s_nop 7"] + max_part([0, 1])
                    nit = 15
                elif kind == "K":
                    valu, nit = [], 1
                elif kind == "W" and idx % 4 == 0:
                    kt = idx // 4
                    valu = ["s_nop 7"] + max_part([2, 3]) + max_fin(kt) + exp_part(0, 32, resc_part() if kt > 0 else [])
                    nit = 31
                elif kind == "W":
                    newregion = False
                elif kind == "V" and idx % 2 == 0:
                    valu = exp_part(32, 64)
                    nit = 15
                else:
                    valu = sum_part(kt)
                    if idx == 7:
                        valu = merge(valu, qpack_list())
                    nit = 15
                if newregion:
                    per = (len(valu) + nit - 1) // nit
            lastl = max(x for x, t in enumerate(lg_log) if t == j)
            out("s_waitcnt lgkmcnt(%d)" % min(15, len(lg_log) - 1 - lastl))
            out(mf % ar(aF[j % NB], 4))
            issue_reads(j + NB)
            for (pc, tag) in vsched.get(pos, []):
                for x in pc:
                    out(x)
                vm_log.append(tag)
            for _ in range(per):
                if valu:
                    s = valu.pop(0)
                    out(s)
                    if s.startswith("buffer_"):
                        vm_log.append(-1)
            if pos == nti - 1:
                carry = n >= 0 and ((kind == "W" and idx % 4 != 3) or (kind == "K" and idx == 0))
                if not carry:
                    while valu:
                        s = valu.pop(0)
                        out(s)
                        if s.startswith("buffer_"):
                            vm_log.append(-1)
                    if n >= 0:
                        out("s_nop 1")
                if n < 0 and idx == 15:
                    out("s_nop 15")
                    for s in qpack_list():
                        out(s)
                    out("s_nop 1")
            j += 1
        return sections, measured

    sec, meas = simulate({})
    site_min = {k: min(v) for k, v in meas.items()}
    sec, meas2 = simulate(site_min)
    assert sec["it1"] == sec["it2"] == sec["it0"] == sec["it3"], "loop body not periodic"
    for s in sec["pro"]:
        a(s)
    a("s_mov_b32 %s, 1" % sr(sT[4]))
    set_kv(a, sKn, sVn, sT[4])
    cp4(a, sWc, sWn)
    cp4(a, sXc, sXn)
    a("s_mov_b32 %s, 2" % sr(sT[4]))
    set_wx(a, sWn, sXn, sT[4])
    a.label("attn_loop")
    if E("ISTAMP"):
        a("s_memtime s[84:85]")
        a("s_waitcnt lgkmcnt(0)")
        a("s_sub_u32 s84, s84, s80")
        a("s_add_u32 m0, %s, 1" % sr(sIter))
        a("s_nop 3")
        a("v_writelane_b32 v1, s84, m0")
    if E("WARM", "1") == "1":
        a("s_cmp_lg_u32 %s, 3" % sr(sIter))
        a("s_cbranch_scc1 attn_nowarm")
        a("s_cmp_lt_u32 s2, 128")
        a("s_cselect_b32 s92, s76, s78")
        a("s_cselect_b32 s93, s77, s79")
        a("s_mov_b32 s94, 4194304")
        a("s_mov_b32 s95, 0x20000")
        a("s_and_b32 s3, s2, 127")
        a("s_lshl_b32 s3, s3, 15")
        a("s_lshl_b32 s4, %s, 13" % sr(sWave))
        a("s_add_u32 s3, s3, s4")
        a("s_add_u32 s4, s3, 4096")
        for i in range(8):
            a("buffer_load_dwordx4 %s, %s, s[92:95], %s offen offset:%d" % (ar(112, 4), vr(vOoff), "s3" if i < 4 else "s4", 1024 * (i % 4)))
        a.label("attn_nowarm")
    for s in sec["it1"]:
        a(s)
    set_o(a, sOp, sIter)
    cp4(a, sKc, sKn)
    cp4(a, sVc, sVn)
    cp4(a, sWc, sWn)
    cp4(a, sXc, sXn)
    a("s_add_u32 %s, %s, 2" % (sr(sT[4]), sr(sIter)))
    set_kv(a, sKn, sVn, sT[4])
    a("s_add_u32 %s, %s, 3" % (sr(sT[4]), sr(sIter)))
    set_wx(a, sWn, sXn, sT[4])
    a("s_add_u32 %s, %s, 1" % (sr(sIter), sr(sIter)))
    a("s_cmp_lt_u32 %s, 4" % sr(sIter))
    a("s_cbranch_scc1 attn_loop")
    a("s_nop 15")
    for s in epilogue_list(sOp):
        a(s)
    if E("STAMP"):
        a("s_memtime s[84:85]")
        a("s_memrealtime s[86:87]")
        a("s_waitcnt lgkmcnt(0)")
        a("s_sub_u32 s84, s84, s80")
        a("s_sub_u32 s86, s86, s82")
        a("v_mov_b32 v4, s84")
        a("v_mov_b32 v5, s86")
        a("s_mov_b32 s90, 256")
        a("s_mov_b32 s91, 0x20000")
        a("v_mov_b32 v3, 0")
        a("s_cmp_eq_u32 s2, 8")
        a("s_cbranch_scc0 attn_done")
        a("buffer_store_dwordx2 v[4:5], v3, s[88:91], 0 offen")
        if E("TSTAMP") or E("ISTAMP") or E("PSTAMP"):
            a("v_lshlrev_b32 v3, 2, v0")
            a("v_add_u32 v3, 16, v3")
            a("buffer_store_dword v1, v3, s[88:91], 0 offen")
    a.label("attn_done")
    a("s_endpgm")


def kd2(name, vgpr, agpr, sgpr):
    return """.amdhsa_kernel %s
  .amdhsa_next_free_vgpr %d
  .amdhsa_next_free_sgpr %d
  .amdhsa_accum_offset %d
  .amdhsa_group_segment_fixed_size 0
  .amdhsa_kernarg_size 104
  .amdhsa_user_sgpr_count 2
  .amdhsa_user_sgpr_kernarg_segment_ptr 1
  .amdhsa_system_sgpr_workgroup_id_x 1
.end_amdhsa_kernel
""" % (name, vgpr + agpr, sgpr, vgpr)


def main():
    out = HEADER
    for name, fn in (("attn_kernel", gen_attn3), ("oproj_kernel", gen_oproj2)):
        a = Asm()
        fn(a)
        out += ".globl %s\n.p2align 8\n.type %s,@function\n" % (name, name)
        out += a.text()
    out += '.section .rodata,"a"\n.p2align 6\n'
    out += kd2("attn_kernel", 256, 128, 96)
    out += ".p2align 6\n"
    out += kd2("oproj_kernel", 128, 160, 96)
    path = sys.argv[1] if len(sys.argv) > 1 else OUT
    open(path, "w").write(out)
    print("wrote", path, len(out))


if __name__ == "__main__":
    main()
```

```python
import os
from gen import vr, sr

E = os.environ.get
PART_OFF = 64 << 20
FLAG_OFF = 96 << 20


def ar(a, n=1):
    return "a%d" % a if n == 1 else "a[%d:%d]" % (a, a + n - 1)


def gen_oproj3(a, sigcode):
    SLOT = 16384
    NSLOT = 8
    D = 7
    NB = 8
    sWo, sO, sOut, sPm, sPp, sFl = 8, 12, 16, 20, 24, 28
    sWave, sM0base, sOff, sBlk, sB, sN, sKh, sIt, sWb, sOb, sWbN, sObN = 44, 45, 46, 47, 48, 49, 50, 51, 52, 53, 54, 55
    vWoff, vBoff = 2, 3
    vTrd = [list(range(4, 8)), list(range(8, 12))]
    vT = list(range(16, 24))
    vACC = 32
    vP = 96
    aF = [4 * i for i in range(NB)]
    aB = 32

    if E("OSTAMP"):
        a("s_memtime s[84:85]")
        a("s_waitcnt lgkmcnt(0)")
        a("s_sub_u32 s84, s84, s80")
        a("v_writelane_b32 v1, s84, %d" % 6)
    a("s_and_b32 s3, s2, 7")
    a("s_lshr_b32 s4, s2, 3")
    a("s_lshr_b32 %s, s3, 2" % sr(sBlk))
    a("s_and_b32 s5, s3, 3")
    a("s_lshl_b32 s5, s5, 2")
    a("s_lshr_b32 s6, s4, 3")
    a("s_add_u32 %s, s5, s6" % sr(sB))
    a("s_bfe_u32 %s, s4, 0x20001" % sr(sN))
    a("s_and_b32 %s, s4, 1" % sr(sKh))
    a("s_cmp_eq_u32 %s, 0" % sr(sBlk))
    a("s_cselect_b32 s56, s76, s78")
    a("s_cselect_b32 s57, s77, s79")
    a("s_mov_b64 s[58:59], s[90:91]")
    a("s_mov_b64 s[60:61], s[72:73]")
    a("s_mov_b64 s[62:63], s[96:97]")
    rr, p = vT[0], vT[1]
    a("v_lshrrev_b32 %s, 4, v0" % vr(rr))
    a("v_and_b32 %s, 15, v0" % vr(p))
    a("s_lshl_b32 s3, %s, 4" % sr(sWave))
    a("v_add_u32 %s, s3, %s" % (vr(vT[2]), vr(rr)))
    a("v_lshlrev_b32 %s, 2, %s" % (vr(vT[3]), vr(rr)))
    a("v_xor_b32 %s, %s, %s" % (vr(vT[3]), vr(vT[3]), vr(p)))
    a("v_lshlrev_b32 %s, 4, %s" % (vr(vT[3]), vr(vT[3])))
    a("v_lshl_add_u32 %s, %s, 10, %s" % (vr(vWoff), vr(vT[2]), vr(vT[3])))
    a("v_lshlrev_b32 %s, 4, v0" % vr(vBoff))
    hh, r4, c4, mh, sw = vT[1], vT[0], vT[2], vT[3], vT[4]
    a("v_lshrrev_b32 %s, 5, v0" % vr(hh))
    a("v_bfe_u32 %s, v0, 2, 2" % vr(r4))
    a("v_and_b32 %s, 3, v0" % vr(c4))
    a("v_bfe_u32 %s, v0, 4, 1" % vr(mh))
    a("v_and_b32 %s, 1, %s" % (vr(sw), vr(c4)))
    a("v_lshlrev_b32 %s, 1, %s" % (vr(sw), vr(sw)))
    a("v_lshrrev_b32 %s, 1, %s" % (vr(vT[5]), vr(c4)))
    a("v_or_b32 %s, %s, %s" % (vr(sw), vr(sw), vr(vT[5])))
    a("v_lshl_add_u32 %s, %s, 3, %s" % (vr(vT[5]), vr(hh), vr(r4)))
    a("v_lshlrev_b32 %s, 8, %s" % (vr(vT[5]), vr(vT[5])))
    a("v_lshrrev_b32 %s, 1, %s" % (vr(vT[6]), vr(sw)))
    a("v_lshl_add_u32 %s, %s, 1, %s" % (vr(vT[6]), vr(mh), vr(vT[6])))
    a("v_lshl_add_u32 %s, %s, 4, %s" % (vr(vT[5]), vr(vT[6]), vr(vT[5])))
    a("v_and_b32 %s, 1, %s" % (vr(vT[6]), vr(sw)))
    a("v_lshl_add_u32 %s, %s, 3, %s" % (vr(vT[5]), vr(vT[6]), vr(vT[5])))
    for dt in range(4):
        a("v_xor_b32 %s, %d, %s" % (vr(vT[6]), dt, vr(r4)))
        a("v_lshl_add_u32 %s, %s, 6, %s" % (vr(vTrd[0][dt]), vr(vT[6]), vr(vT[5])))
        a("v_add_u32 %s, 0x10000, %s" % (vr(vTrd[1][dt]), vr(vTrd[0][dt])))
    for i in range(64):
        a("v_mov_b32 %s, 0" % vr(vACC + i))
    a("s_lshl_b32 s3, %s, 8" % sr(sN))
    a("s_add_u32 %s, s56, s3" % sr(sWo))
    a("s_addc_u32 %s, s57, 0" % sr(sWo + 1))
    a("s_sub_u32 %s, 4194304, s3" % sr(sWo + 2))
    a("s_mov_b32 %s, 0x20000" % sr(sWo + 3))
    a("s_lshl_b32 s3, %s, 6" % sr(sBlk))
    a("s_lshl_b32 s4, %s, 2" % sr(sB))
    a("s_add_u32 s3, s3, s4")
    a("s_add_u32 s3, s3, %s" % sr(sWave))
    a("s_lshl_b32 s3, s3, 18")
    a("s_add_u32 %s, s60, s3" % sr(sO))
    a("s_addc_u32 %s, s61, 0" % sr(sO + 1))
    a("s_mov_b32 %s, 262144" % sr(sO + 2))
    a("s_mov_b32 %s, 0x20000" % sr(sO + 3))
    a("s_lshl_b32 s3, %s, 7" % sr(sB))
    a("s_lshl_b32 s4, %s, 5" % sr(sWave))
    a("s_add_u32 s3, s3, s4")
    a("s_lshl_b32 s3, s3, 11")
    a("s_lshl_b32 s4, %s, 10" % sr(sBlk))
    a("s_add_u32 s3, s3, s4")
    a("s_lshl_b32 s4, %s, 8" % sr(sN))
    a("s_add_u32 s3, s3, s4")
    a("s_lshl_b32 s4, %s, 7" % sr(sKh))
    a("s_add_u32 s3, s3, s4")
    a("s_add_u32 %s, s58, s3" % sr(sOut))
    a("s_addc_u32 %s, s59, 0" % sr(sOut + 1))
    a("s_sub_u32 %s, 4194304, s3" % sr(sOut + 2))
    a("s_mov_b32 %s, 0x20000" % sr(sOut + 3))
    for srd, x in ((sPm, 0), (sPp, 8)):
        a("s_xor_b32 s3, s2, %d" % x)
        a("s_lshl_b32 s3, s3, 15")
        a("s_lshl_b32 s4, %s, 13" % sr(sWave))
        a("s_add_u32 s3, s3, s4")
        a("s_add_u32 s3, s3, 0x%x" % PART_OFF)
        a("s_add_u32 %s, s60, s3" % sr(srd))
        a("s_addc_u32 %s, s61, 0" % sr(srd + 1))
        a("s_mov_b32 %s, 8192" % sr(srd + 2))
        a("s_mov_b32 %s, 0x20000" % sr(srd + 3))
    a("s_mov_b32 %s, s62" % sr(sFl))
    a("s_mov_b32 %s, s63" % sr(sFl + 1))
    a("s_mov_b32 %s, 256" % sr(sFl + 2))
    a("s_mov_b32 %s, 0x20000" % sr(sFl + 3))
    a("s_mov_b32 %s, 0" % sr(sIt))

    def set_base(o, sOx, sItx):
        o("s_lshr_b32 s3, %s, 1" % sr(sItx))
        o("s_lshl_b32 s4, %s, 1" % sr(sKh))
        o("s_add_u32 s3, s3, s4")
        if E("MAP", "blk8") == "rot":
            o("s_add_u32 s3, s3, %s" % sr(sB))
        o("s_and_b32 s3, s3, 3")
        o("s_lshl_b32 s3, s3, 16")
        o("s_and_b32 s4, %s, 1" % sr(sItx))
        o("s_lshl_b32 s4, s4, 15")
        o("s_add_u32 s3, s3, s4")
        o("s_cmp_lt_u32 %s, 4" % sr(sItx))
        o("s_cselect_b32 %s, s3, 0x40000" % sr(sOx))
    set_base(a, sOb, sIt)
    a("s_mov_b32 s5, 1")
    set_base(a, sObN, 5)
    a("s_lshl_b32 %s, %s, 4" % (sr(sWb), sr(sOb)))
    a("s_lshl_b32 %s, %s, 4" % (sr(sWbN), sr(sObN)))

    NIT = 4
    ntiles = 8 * (NIT + 2)

    def tile_items(g):
        slot = (g % NSLOT) * SLOT
        hi = 1 if slot >= 65536 else 0
        slot -= 65536 * hi
        items = []
        for ks in range(4):
            for nt in range(4):
                reads = [("ds_read_b64_tr_b16 %%s, %s offset:%d" % (vr(vTrd[hi][nt]), slot + (16 * ks + 4 * k) * 256), 2 * k) for k in range(2)]
                mf = "v_mfma_f32_32x32x16_bf16 %s, %%s, %s, %s" % (vr(vACC + 16 * nt, 16), ar(aB + 16 * (g % NSLOT) + 4 * ks, 4), vr(vACC + 16 * nt, 16))
                items.append((reads, mf))
        return items

    allitems = []
    for g in range(ntiles):
        for it in tile_items(g):
            allitems.append((g,) + it)

    def pieces(gt, cur_it):
        rel = gt - 8 * cur_it
        wb, ob = sWb, sOb
        if rel >= 8:
            rel -= 8
            wb, ob = sWbN, sObN
        slot = (gt % NSLOT) * SLOT
        P = []
        for j in range(4):
            P.append(["s_add_u32 m0, %s, %d" % (sr(sM0base), slot + 1024 * j),
                      "s_add_u32 %s, %s, %d" % (sr(sOff), sr(wb), rel * 65536 + j * 4096),
                      "buffer_load_dwordx4 %s, %s, %s offen lds" % (vr(vWoff), sr(sWo, 4), sr(sOff))])
            P.append(["s_add_u32 %s, %s, %d" % (sr(sOff), sr(ob), rel * 4096),
                      "buffer_load_dwordx4 %s, %s, %s, %s offen offset:%d%s" % (ar(aB + 16 * (gt % NSLOT) + 4 * j, 4), vr(vBoff), sr(sO, 4), sr(sOff), 1024 * j, E("OFLAG", ""))])
        return P

    def poll_code(which, allwaves=False):
        L = []
        if not allwaves:
            L.append("s_cmp_lg_u32 %s, 0" % sr(sWave))
            L.append("s_cbranch_scc1 oproj_ready%d" % which)
        L.append("s_lshl_b32 s3, %s, 4" % sr(sBlk))
        L.append("s_add_u32 s3, s3, %s" % sr(sB))
        L.append("s_lshl_b32 s3, s3, 2")
        L.append("v_mov_b32 %s, s3" % vr(vT[2]))
        L.append("s_lshl_b32 s4, %s, 4" % sr(sKh))
        L.append("s_add_u32 s4, s4, %d" % (8 * which))
        L.append("s_mov_b32 s5, 0")
        L.append("oproj_wait_loop%d:" % which)
        L.append("buffer_load_dword %s, %s, %s, 0 offen sc1" % (vr(vT[3]), vr(vT[2]), sr(sFl, 4)))
        L.append("s_waitcnt vmcnt(0)")
        L.append("v_readfirstlane_b32 s3, %s" % vr(vT[3]))
        L.append("s_add_u32 s5, s5, 1")
        L.append("s_lshr_b32 s3, s3, s4")
        L.append("s_and_b32 s3, s3, 0xff")
        L.append("s_cmp_eq_u32 s3, 8")
        L.append("s_cbranch_scc1 oproj_ready%d" % which)
        L.append("s_sleep 8")
        L.append("s_cmp_lt_u32 s5, 0x100000")
        L.append("s_cbranch_scc1 oproj_wait_loop%d" % which)
        L.append("oproj_ready%d:" % which)
        return L

    def simulate(site_min):
        sections = {"pro": []}
        st = {"cur": "pro"}
        vm_log, lg_log, measured = [], [], {}

        def out(s):
            sections[st["cur"]].append(s)

        def issue_reads(j):
            g, reads, mf = allitems[j]
            f = aF[j % NB]
            for (txt, off) in reads:
                out(txt % ar(f + off, 2))
                lg_log.append(j)
        out("v_readfirstlane_b32 s3, v255")
        out("s_lshl_b32 s4, %s, 4" % sr(sKh))
        out("s_lshr_b32 s3, s3, s4")
        out("s_and_b32 s3, s3, 0xff")
        out("s_cmp_eq_u32 s3, 8")
        out("s_cbranch_scc1 oproj_go")
        for x in poll_code(0, allwaves=True):
            out(x)
        out("oproj_go:")
        for gt in range(D):
            for pc in pieces(gt, 0):
                for x in pc:
                    out(x)
                vm_log.append(gt)
        out("s_waitcnt vmcnt(%d)" % (8 * D))
        out("s_barrier")
        for x in sigcode:
            out(x)
        last = max(n for n, t in enumerate(vm_log) if t == 0)
        out("s_waitcnt vmcnt(%d)" % min(63, len(vm_log) - 1 - last))
        out("s_barrier")
        for j in range(NB):
            issue_reads(j)
        for j in range(16 * 8 * NIT):
            g, reads, mf = allitems[j]
            pos = j % 16
            it = g // 8
            if pos == 0:
                if g % 8 == 0:
                    st["cur"] = "it%d" % it
                    sections[st["cur"]] = []
                site = g % 8
                last = max(x for x, t in enumerate(vm_log) if t == g + 1)
                need = len(vm_log) - 1 - last
                measured.setdefault(site, []).append(need)
                out("s_waitcnt vmcnt(%d)" % min(63, site_min.get(site, need)))
                out("s_barrier")
                pcs = pieces(g + D, it)
            lastl = max(x for x, t in enumerate(lg_log) if t == j)
            out("s_waitcnt lgkmcnt(%d)" % min(15, len(lg_log) - 1 - lastl))
            out(mf % ar(aF[j % NB], 4))
            issue_reads(j + NB)
            if pos % 2 == 1:
                for x in pcs[pos // 2]:
                    out(x)
                vm_log.append(g + D)
        return sections, measured

    sec, meas = simulate({})
    site_min = {k: min(v) for k, v in meas.items()}
    sec, _ = simulate(site_min)
    assert sec["it0"] == sec["it1"] == sec["it2"] == sec["it3"]
    for s in sec["pro"]:
        if s.endswith(":"):
            a.label(s[:-1])
        else:
            a(s)
    if E("OSTAMP"):
        a("s_memtime s[84:85]")
        a("s_waitcnt lgkmcnt(0)")
        a("s_sub_u32 s84, s84, s80")
        a("v_writelane_b32 v1, s84, %d" % 7)
    a.label("oproj_loop")
    a("s_cmp_lg_u32 %s, 1" % sr(sIt))
    a("s_cbranch_scc1 oproj_nopoll")
    for x in poll_code(1):
        if x.endswith(":"):
            a.label(x[:-1])
        else:
            a(x)
    a.label("oproj_nopoll")
    for s in sec["it0"]:
        a(s)
    a("s_mov_b32 %s, %s" % (sr(sWb), sr(sWbN)))
    a("s_mov_b32 %s, %s" % (sr(sOb), sr(sObN)))
    a("s_add_u32 s5, %s, 2" % sr(sIt))
    set_base(a, sObN, 5)
    a("s_lshl_b32 %s, %s, 4" % (sr(sWbN), sr(sObN)))
    a("s_add_u32 %s, %s, 1" % (sr(sIt), sr(sIt)))
    a("s_cmp_lt_u32 %s, 4" % sr(sIt))
    a("s_cbranch_scc1 oproj_loop")
    if E("OSTAMP"):
        a("s_memtime s[84:85]")
        a("s_waitcnt lgkmcnt(0)")
        a("s_sub_u32 s84, s84, s80")
        a("v_writelane_b32 v1, s84, %d" % 8)
    a("s_nop 15")
    a("s_cmp_eq_u32 %s, 0" % sr(sKh))
    a("s_cbranch_scc1 oproj_send_hi")
    a("s_mov_b32 %s, 4096" % sr(sOff))
    for i in range(8):
        a("buffer_store_dwordx4 %s, %s, %s, %s offen offset:%d sc1" % (vr(vACC + 4 * i, 4), vr(vBoff), sr(sPm, 4), "0" if i < 4 else sr(sOff), 1024 * (i % 4)))
    a("s_nop 1")
    for i in range(32):
        a("v_mov_b32 %s, %s" % (vr(vACC + i), vr(vACC + 32 + i)))
    a("s_branch oproj_sent")
    a.label("oproj_send_hi")
    a("s_mov_b32 %s, 4096" % sr(sOff))
    for i in range(8):
        a("buffer_store_dwordx4 %s, %s, %s, %s offen offset:%d sc1" % (vr(vACC + 32 + 4 * i, 4), vr(vBoff), sr(sPm, 4), "0" if i < 4 else sr(sOff), 1024 * (i % 4)))
    a.label("oproj_sent")
    a("s_waitcnt vmcnt(0)")
    a("s_barrier")
    a("s_and_b32 s3, s2, 31")
    a("s_lshl_b32 s3, 1, s3")
    a("v_mov_b32 %s, s3" % vr(vT[0]))
    a("s_lshr_b32 s3, s2, 5")
    a("s_lshl_b32 s3, s3, 2")
    a("s_add_u32 s3, s3, 128")
    a("v_mov_b32 %s, s3" % vr(vT[1]))
    a("v_mov_b32 %s, s3" % vr(vT[2]))
    a("s_xor_b32 s4, s2, 8")
    a("s_and_b32 s4, s4, 31")
    a("s_cmp_lg_u32 %s, 0" % sr(sWave))
    a("s_cbranch_scc1 oproj_got")
    a("s_mov_b64 exec, 1")
    a("buffer_atomic_or %s, %s, %s, 0 offen sc1" % (vr(vT[0]), vr(vT[1]), sr(sFl, 4)))
    a("s_mov_b64 exec, -1")
    a.label("oproj_poll")
    a("s_mov_b32 s5, 0")
    a.label("oproj_poll_loop")
    a("buffer_load_dword %s, %s, %s, 0 offen sc1" % (vr(vT[3]), vr(vT[2]), sr(sFl, 4)))
    a("s_waitcnt vmcnt(0)")
    a("v_readfirstlane_b32 s3, %s" % vr(vT[3]))
    a("s_add_u32 s5, s5, 1")
    a("s_lshr_b32 s3, s3, s4")
    a("s_and_b32 s3, s3, 1")
    a("s_cmp_eq_u32 s3, 1")
    a("s_cbranch_scc1 oproj_got")
    a("s_sleep 4")
    a("s_cmp_lt_u32 s5, 0x100000")
    a("s_cbranch_scc1 oproj_poll_loop")
    a.label("oproj_got")
    a("s_barrier")
    if E("OSTAMP"):
        a("s_memtime s[84:85]")
        a("s_waitcnt lgkmcnt(0)")
        a("s_sub_u32 s84, s84, s80")
        a("v_writelane_b32 v1, s84, %d" % 9)
    a("s_mov_b32 %s, 4096" % sr(sOff))
    for i in range(8):
        a("buffer_load_dwordx4 %s, %s, %s, %s offen offset:%d sc1" % (vr(vP + 4 * i, 4), vr(vBoff), sr(sPp, 4), "0" if i < 4 else sr(sOff), 1024 * (i % 4)))
    a("v_and_b32 %s, 31, v0" % vr(vT[0]))
    a("v_lshrrev_b32 %s, 5, v0" % vr(vT[1]))
    a("v_lshlrev_b32 %s, 11, %s" % (vr(vT[0]), vr(vT[0])))
    a("v_lshl_add_u32 %s, %s, 4, %s" % (vr(vT[0]), vr(vT[1]), vr(vT[0])))
    a("s_waitcnt vmcnt(0)")
    for i in range(32):
        a("v_add_f32 %s, %s, %s" % (vr(vACC + i), vr(vACC + i), vr(vP + i)))
    for i in range(16):
        a("v_cvt_pk_bf16_f32 %s, %s, %s" % (vr(vP + i), vr(vACC + 2 * i), vr(vACC + 2 * i + 1)))
    for T in range(4):
        a("buffer_store_dwordx4 %s, %s, %s, 0 offen offset:%d" % (vr(vP + 4 * T, 4), vr(vT[0]), sr(sOut, 4), 32 * T))
```

```python
import sys, os
import gen as g1
from gen import Asm, vr, sr, f32bits, SCALE_LOG2E, kd, NAME, OUT, gen_oproj
from gen_op3 import gen_oproj3

KVFLAG = os.environ.get("KVFLAG", " nt")
STFLAG = os.environ.get("STFLAG", " sc1")
E = os.environ.get


def ar(a, n=1):
    return "a%d" % a if n == 1 else "a[%d:%d]" % (a, a + n - 1)


HEADER = g1.HEADER.split("; Two launches")[0] + """; One persistent launch: fused q projection + flash attention (O in d_ws), then the output projection.
; @launch grid=(256,1,1) block=(256,1,1) lds=131072
.amdgcn_target "amdgcn-amd-amdhsa--gfx950"
.text
"""


def gen_attn3(a):
    SLOT = 16384
    NSLOT = 8
    PF = NSLOT - 1
    NB = 8
    NXB = 4
    sKc, sVc, sKn, sVn, sWc, sWn, sXc, sXn, sOp = 8, 12, 16, 20, 24, 28, 32, 36, 40
    sWave, sM0base, sC, sOff, sIter, sH, sJ4, sM0b2 = 44, 45, 46, 47, 48, 49, 50, 74
    sT = list(range(51, 56))
    sPA, sPB_, sWs = 56, 64, 72
    sSigOff, sSigVal = 75, 100
    sBlkC, sJ7 = 101, 7
    vKoff = [2, 3, 4, 5]
    vVoff, vWoff = 6, 7
    vKrd = [list(range(8, 16)), list(range(16, 24))]
    vTrd = [list(range(24, 28)), list(range(28, 32))]
    vXoff, vOoff = 32, 33
    vM, vL, vAlpha = 34, 35, 36
    vT = list(range(40, 48))
    vACC = 48
    vS = 112
    vPB = 176
    vQB = 208
    vQT = 240
    vET = 248
    vXrd = [[250, 251], [252, 253]]
    aQ = 0
    aF = [64 + 4 * i for i in range(NB)]
    aXB = [96 + 4 * i for i in range(NXB)]

    a.label(NAME + "_kernel")
    a("s_cmp_ge_u32 s2, 256")
    a("s_cbranch_scc1 attn_done")
    if E("STAMP"):
        a("s_memtime s[80:81]")
        a("s_memrealtime s[82:83]")
    a("s_load_dwordx8 s[%d:%d], s[0:1], 0" % (sPA, sPA + 7))
    a("s_load_dwordx8 s[%d:%d], s[0:1], 40" % (sPB_, sPB_ + 7))
    a("s_load_dwordx2 s[%d:%d], s[0:1], 96" % (sWs, sWs + 1))
    a("s_load_dwordx2 s[76:77], s[0:1], 32")
    a("s_load_dwordx2 s[78:79], s[0:1], 72")
    a("s_load_dwordx2 s[90:91], s[0:1], 80")
    a("s_and_b32 s3, s2, 7")
    a("s_lshr_b32 s4, s2, 3")
    a("s_lshr_b32 %s, s3, 2" % sr(sBlkC))
    a("s_and_b32 s5, s3, 3")
    a("s_lshl_b32 s5, s5, 2")
    a("s_lshr_b32 s6, s4, 3")
    a("s_add_u32 %s, s5, s6" % sr(sJ4))
    a("s_and_b32 %s, s4, 7" % sr(sJ7))
    a("v_lshrrev_b32 v1, 6, v0")
    a("v_and_b32 v0, 63, v0")
    a("v_readfirstlane_b32 %s, v1" % sr(sWave))
    a("s_mov_b32 %s, 0x%08x" % (sr(sC), f32bits(SCALE_LOG2E)))
    a("s_lshl_b32 %s, %s, 12" % (sr(sM0base), sr(sWave)))
    a("s_lshl_b32 %s, %s, 11" % (sr(sM0b2), sr(sWave)))
    rr, p = vT[0], vT[1]
    a("v_lshrrev_b32 %s, 4, v0" % vr(rr))
    a("v_and_b32 %s, 15, v0" % vr(p))
    a("s_lshl_b32 s3, %s, 4" % sr(sWave))
    a("v_add_u32 %s, s3, %s" % (vr(vT[2]), vr(rr)))
    for j in range(4):
        a("v_add_u32 %s, %d, %s" % (vr(vT[3]), 4 * j, vr(rr)))
        a("v_xor_b32 %s, %s, %s" % (vr(vT[3]), vr(vT[3]), vr(p)))
        a("v_lshlrev_b32 %s, 4, %s" % (vr(vT[3]), vr(vT[3])))
        a("v_lshl_add_u32 %s, %s, 8, %s" % (vr(vKoff[j]), vr(vT[2]), vr(vT[3])))
    a("v_lshlrev_b32 %s, 2, %s" % (vr(vT[3]), vr(rr)))
    a("v_xor_b32 %s, %s, %s" % (vr(vT[3]), vr(vT[3]), vr(p)))
    a("v_lshlrev_b32 %s, 4, %s" % (vr(vT[3]), vr(vT[3])))
    a("v_lshl_add_u32 %s, %s, 8, %s" % (vr(vVoff), vr(vT[2]), vr(vT[3])))
    a("s_lshl_b32 s3, %s, 3" % sr(sWave))
    a("v_add_u32 %s, s3, %s" % (vr(vT[2]), vr(rr)))
    a("v_lshl_add_u32 %s, %s, 13, %s" % (vr(vWoff), vr(vT[2]), vr(vT[3])))
    a("v_lshrrev_b32 %s, 2, v0" % vr(vT[2]))
    a("s_lshl_b32 s3, %s, 5" % sr(sWave))
    a("v_add_u32 %s, s3, %s" % (vr(vT[2]), vr(vT[2])))
    a("v_and_b32 %s, 3, v0" % vr(vT[3]))
    a("v_xor_b32 %s, %s, %s" % (vr(vT[3]), vr(vT[3]), vr(rr)))
    a("v_lshlrev_b32 %s, 4, %s" % (vr(vT[3]), vr(vT[3])))
    a("v_lshl_add_u32 %s, %s, 10, %s" % (vr(vXoff), vr(vT[2]), vr(vT[3])))
    r, hh, pr = vT[0], vT[1], vT[2]
    a("v_and_b32 %s, 31, v0" % vr(r))
    a("v_lshrrev_b32 %s, 5, v0" % vr(hh))
    a("v_and_b32 %s, 0x13, %s" % (vr(pr), vr(r)))
    a("v_and_b32 %s, 4, %s" % (vr(vT[3]), vr(r)))
    a("v_lshl_or_b32 %s, %s, 1, %s" % (vr(pr), vr(vT[3]), vr(pr)))
    a("v_and_b32 %s, 8, %s" % (vr(vT[3]), vr(r)))
    a("v_lshrrev_b32 %s, 1, %s" % (vr(vT[3]), vr(vT[3])))
    a("v_or_b32 %s, %s, %s" % (vr(pr), vr(pr), vr(vT[3])))
    a("v_and_b32 %s, 15, %s" % (vr(vT[4]), vr(pr)))
    for t in range(8):
        a("v_add_u32 %s, %d, %s" % (vr(vT[3]), 2 * t, vr(hh)))
        a("v_xor_b32 %s, %s, %s" % (vr(vT[3]), vr(vT[3]), vr(vT[4])))
        a("v_lshlrev_b32 %s, 4, %s" % (vr(vT[3]), vr(vT[3])))
        a("v_lshl_add_u32 %s, %s, 8, %s" % (vr(vKrd[0][t]), vr(pr), vr(vT[3])))
        a("v_add_u32 %s, 0x10000, %s" % (vr(vKrd[1][t]), vr(vKrd[0][t])))
    a("s_lshl_b32 s3, %s, 5" % sr(sWave))
    a("v_add_u32 %s, s3, %s" % (vr(vT[3]), vr(r)))
    a("v_lshlrev_b32 %s, 6, %s" % (vr(vT[3]), vr(vT[3])))
    a("v_add_u32 %s, 0x2000, %s" % (vr(vT[3]), vr(vT[3])))
    a("v_bfe_u32 %s, %s, 2, 2" % (vr(vT[4]), vr(r)))
    for ks in range(2):
        a("v_add_u32 %s, %d, %s" % (vr(vT[5]), 2 * ks, vr(hh)))
        a("v_xor_b32 %s, %s, %s" % (vr(vT[5]), vr(vT[5]), vr(vT[4])))
        a("v_lshl_add_u32 %s, %s, 4, %s" % (vr(vXrd[0][ks]), vr(vT[5]), vr(vT[3])))
        a("v_add_u32 %s, 0x10000, %s" % (vr(vXrd[1][ks]), vr(vXrd[0][ks])))
    a("v_lshlrev_b32 %s, 4, v0" % vr(vOoff))
    r4, c4, mh, sw = vT[0], vT[2], vT[3], vT[4]
    a("v_bfe_u32 %s, v0, 2, 2" % vr(r4))
    a("v_and_b32 %s, 3, v0" % vr(c4))
    a("v_bfe_u32 %s, v0, 4, 1" % vr(mh))
    a("v_and_b32 %s, 1, %s" % (vr(sw), vr(c4)))
    a("v_lshlrev_b32 %s, 1, %s" % (vr(sw), vr(sw)))
    a("v_lshrrev_b32 %s, 1, %s" % (vr(vT[5]), vr(c4)))
    a("v_or_b32 %s, %s, %s" % (vr(sw), vr(sw), vr(vT[5])))
    a("v_lshl_add_u32 %s, %s, 3, %s" % (vr(vT[5]), vr(hh), vr(r4)))
    a("v_lshlrev_b32 %s, 8, %s" % (vr(vT[5]), vr(vT[5])))
    a("v_lshrrev_b32 %s, 1, %s" % (vr(vT[6]), vr(sw)))
    a("v_lshl_add_u32 %s, %s, 1, %s" % (vr(vT[6]), vr(mh), vr(vT[6])))
    a("v_lshl_add_u32 %s, %s, 4, %s" % (vr(vT[5]), vr(vT[6]), vr(vT[5])))
    a("v_and_b32 %s, 1, %s" % (vr(vT[6]), vr(sw)))
    a("v_lshl_add_u32 %s, %s, 3, %s" % (vr(vT[5]), vr(vT[6]), vr(vT[5])))
    for dt in range(4):
        a("v_xor_b32 %s, %d, %s" % (vr(vT[6]), dt, vr(r4)))
        a("v_lshl_add_u32 %s, %s, 6, %s" % (vr(vTrd[0][dt]), vr(vT[6]), vr(vT[5])))
        a("v_add_u32 %s, 0x10000, %s" % (vr(vTrd[1][dt]), vr(vTrd[0][dt])))
    a("s_waitcnt lgkmcnt(0)")

    def task_params(o, sR):
        o("s_mov_b32 %s, %s" % (sr(sT[1]), sr(sJ4)))
        if E("MAP", "blk8") == "rot":
            o("s_add_u32 %s, %s, %s" % (sr(sH), sr(sR), sr(sJ4)))
        else:
            o("s_mov_b32 %s, %s" % (sr(sH), sr(sR)))
        o("s_and_b32 %s, %s, 3" % (sr(sH), sr(sH)))
        o("s_lshl_b32 %s, %s, 3" % (sr(sH), sr(sH)))
        o("s_add_u32 %s, %s, %s" % (sr(sH), sr(sH), sr(sJ7)))
        o("s_cmp_lt_u32 %s, 4" % sr(sR))
        o("s_cselect_b32 %s, %s, 2" % (sr(sT[0]), sr(sBlkC)))

    def sel_ptr(o, dst, idx):
        o("s_cmp_eq_u32 %s, 0" % sr(sT[0]))
        o("s_cselect_b32 %s, %s, %s" % (sr(dst), sr(sPA + 2 * idx), sr(sPB_ + 2 * idx)))
        o("s_cselect_b32 %s, %s, %s" % (sr(dst + 1), sr(sPA + 2 * idx + 1), sr(sPB_ + 2 * idx + 1)))

    def set_kv(o, sK, sV, sR):
        task_params(o, sR)
        o("s_lshl_b32 %s, %s, 5" % (sr(sT[2]), sr(sT[1])))
        o("s_add_u32 %s, %s, %s" % (sr(sT[2]), sr(sT[2]), sr(sH)))
        o("s_lshl_b32 %s, %s, 17" % (sr(sT[2]), sr(sT[2])))
        for srd, idx in ((sK, 1), (sV, 2)):
            sel_ptr(o, srd, idx)
            o("s_add_u32 %s, %s, %s" % (sr(srd), sr(srd), sr(sT[2])))
            o("s_addc_u32 %s, %s, 0" % (sr(srd + 1), sr(srd + 1)))
            o("s_cmp_lt_u32 %s, 2" % sr(sT[0]))
            o("s_cselect_b32 %s, 131072, 0" % sr(srd + 2))
            o("s_mov_b32 %s, 0x20000" % sr(srd + 3))

    def set_wx(o, sW, sX, sR):
        task_params(o, sR)
        sel_ptr(o, sW, 3)
        o("s_lshl_b32 %s, %s, 8" % (sr(sT[2]), sr(sH)))
        o("s_add_u32 %s, %s, %s" % (sr(sW), sr(sW), sr(sT[2])))
        o("s_addc_u32 %s, %s, 0" % (sr(sW + 1), sr(sW + 1)))
        o("s_sub_u32 %s, 4194304, %s" % (sr(sT[2]), sr(sT[2])))
        o("s_cmp_lt_u32 %s, 2" % sr(sT[0]))
        o("s_cselect_b32 %s, %s, 0" % (sr(sW + 2), sr(sT[2])))
        o("s_mov_b32 %s, 0x20000" % sr(sW + 3))
        sel_ptr(o, sX, 0)
        o("s_lshl_b32 %s, %s, 17" % (sr(sT[2]), sr(sT[1])))
        o("s_add_u32 %s, %s, %s" % (sr(sX), sr(sX), sr(sT[2])))
        o("s_addc_u32 %s, %s, 0" % (sr(sX + 1), sr(sX + 1)))
        o("s_cmp_lt_u32 %s, 2" % sr(sT[0]))
        o("s_cselect_b32 %s, 131072, 0" % sr(sX + 2))
        o("s_mov_b32 %s, 0x20000" % sr(sX + 3))

    def set_o(o, sO, sR, valid=True):
        task_params(o, sR)
        o("s_lshl_b32 %s, %s, 6" % (sr(sT[2]), sr(sT[0])))
        o("s_lshl_b32 %s, %s, 2" % (sr(sT[3]), sr(sT[1])))
        o("s_add_u32 %s, %s, %s" % (sr(sT[2]), sr(sT[2]), sr(sT[3])))
        o("s_add_u32 %s, %s, %s" % (sr(sT[2]), sr(sT[2]), sr(sWave)))
        o("s_lshl_b32 %s, %s, 8" % (sr(sT[2]), sr(sT[2])))
        o("s_lshl_b32 %s, %s, 3" % (sr(sT[3]), sr(sH)))
        o("s_add_u32 %s, %s, %s" % (sr(sT[2]), sr(sT[2]), sr(sT[3])))
        o("s_lshl_b32 %s, %s, 10" % (sr(sT[2]), sr(sT[2])))
        o("s_add_u32 %s, %s, %s" % (sr(sO), sr(sWs), sr(sT[2])))
        o("s_addc_u32 %s, %s, 0" % (sr(sO + 1), sr(sWs + 1)))
        o("s_mov_b32 %s, %d" % (sr(sO + 2), 8192 if valid else 0))
        o("s_mov_b32 %s, 0x20000" % sr(sO + 3))

    def set_sig(o, sR):
        task_params(o, sR)
        o("s_lshl_b32 %s, %s, 4" % (sr(sT[2]), sr(sT[0])))
        o("s_add_u32 %s, %s, %s" % (sr(sT[2]), sr(sT[2]), sr(sT[1])))
        o("s_lshl_b32 %s, %s, 2" % (sr(sT[2]), sr(sT[2])))
        o("s_add_u32 %s, %s, %s" % (sr(sT[2]), sr(sT[2]), sr(sR)))
        o("s_and_b32 %s, %s, 3" % (sr(sT[3]), sr(sT[2])))
        o("s_lshl_b32 %s, %s, 3" % (sr(sT[3]), sr(sT[3])))
        o("s_lshl_b32 %s, 1, %s" % (sr(sSigVal), sr(sT[3])))
        o("s_and_b32 %s, %s, 0xfc" % (sr(sSigOff), sr(sT[2])))

    sigcount = [0]

    def signal_code():
        sigcount[0] += 1
        lab = "attn_nosig%d" % sigcount[0]
        return ["s_cmp_lg_u32 %s, 0" % sr(sWave),
                "s_cbranch_scc1 %s" % lab,
                "v_mov_b32 %s, %s" % (vr(vET + 1), sr(sSigVal)),
                "v_mov_b32 %s, %s" % (vr(vET), sr(sSigOff)),
                "s_mov_b64 exec, 1",
                "buffer_atomic_add %s, %s, s[96:99], 0 offen sc1" % (vr(vET + 1), vr(vET)),
                "s_mov_b64 exec, -1",
                lab + ":"]

    def cp4(o, d, s):
        o("s_mov_b64 %s, %s" % (sr(d, 2), sr(s, 2)))
        o("s_mov_b64 %s, %s" % (sr(d + 2, 2), sr(s + 2, 2)))

    a("s_load_dwordx2 s[96:97], s[0:1], 88")
    a("s_mov_b32 s98, 256")
    a("s_mov_b32 s99, 0x20000")
    a("s_mov_b32 %s, 0" % sr(sSigOff))
    a("s_mov_b32 %s, 0" % sr(sSigVal))
    a("s_waitcnt lgkmcnt(0)")
    a("s_mov_b32 %s, 0" % sr(sIter))
    a("s_mov_b32 %s, 0" % sr(sT[4]))
    set_wx(a, sWc, sXc, sT[4])
    set_kv(a, sKn, sVn, sT[4])
    set_kv(a, sKc, sVc, sT[4])
    set_o(a, sOp, sT[4], valid=False)
    a("s_mov_b32 %s, 1" % sr(sT[4]))
    set_wx(a, sWn, sXn, sT[4])

    def iter_tiles(n):
        t = []
        for kt in range(4):
            t += [("K", 2 * kt, n), ("K", 2 * kt + 1, n)] + [("W", 4 * kt + i, n) for i in range(4)] + [("V", 2 * kt, n), ("V", 2 * kt + 1, n)]
        return t
    NIT = 4
    tiles = [("W", i, -1) for i in range(16)]
    for n in range(NIT + 1):
        tiles += iter_tiles(n)

    ch = vT[0:4]
    mc = vT[4]

    def max_part(cs):
        L = []
        for c in cs:
            L.append("v_max3_f32 %s, %s, %s, %s" % (vr(ch[c]), vr(vS + 16 * c), vr(vS + 16 * c + 1), vr(vS + 16 * c + 2)))
        for k in range(3, 15, 2):
            for c in cs:
                L.append("v_max3_f32 %s, %s, %s, %s" % (vr(ch[c]), vr(ch[c]), vr(vS + 16 * c + k), vr(vS + 16 * c + k + 1)))
        for c in cs:
            L.append("v_max_f32 %s, %s, %s" % (vr(ch[c]), vr(ch[c]), vr(vS + 16 * c + 15)))
        return L

    def max_fin(kt):
        L = []
        L.append("v_max3_f32 %s, %s, %s, %s" % (vr(ch[0]), vr(ch[0]), vr(ch[1]), vr(ch[2])))
        L.append("v_max_f32 %s, %s, %s" % (vr(ch[0]), vr(ch[0]), vr(ch[3])))
        L.append("v_mov_b32 %s, %s" % (vr(ch[1]), vr(ch[0])))
        L.append("s_nop 1")
        L.append("v_permlane32_swap_b32 %s, %s" % (vr(ch[0]), vr(ch[1])))
        L.append("s_nop 1")
        if kt == 0:
            L.append("v_max_f32 %s, %s, %s" % (vr(vM), vr(ch[0]), vr(ch[1])))
        else:
            L.append("v_max3_f32 %s, %s, %s, %s" % (vr(ch[2]), vr(ch[0]), vr(ch[1]), vr(vM)))
            L.append("v_sub_f32 %s, %s, %s" % (vr(ch[3]), vr(vM), vr(ch[2])))
            L.append("v_mul_f32 %s, %s, %s" % (vr(ch[3]), sr(sC), vr(ch[3])))
            L.append("v_exp_f32 %s, %s" % (vr(vAlpha), vr(ch[3])))
            L.append("v_mov_b32 %s, %s" % (vr(vM), vr(ch[2])))
        L.append("v_mul_f32 %s, %s, %s" % (vr(mc), sr(sC), vr(vM)))
        return L

    def exp_part(lo, hi, extra=()):
        L = []
        extra = list(extra)
        ng = (hi - lo) // 4
        for gi in range(ng):
            b = lo + 4 * gi
            for i in range(b, b + 4):
                L.append("v_fma_f32 %s, %s, %s, -%s" % (vr(vS + i), vr(vS + i), sr(sC), vr(mc)))
            for i in range(b, b + 4):
                L.append("v_exp_f32 %s, %s" % (vr(vS + i), vr(vS + i)))
            k = len(extra) // ng
            L += extra[gi * k:(gi + 1) * k]
            if gi > 0:
                for i in range(b - 4, b, 2):
                    L.append("v_cvt_pk_bf16_f32 %s, %s, %s" % (vr(vPB + i // 2), vr(vS + i), vr(vS + i + 1)))
        L.append("s_nop 0")
        for i in range(hi - 4, hi, 2):
            L.append("v_cvt_pk_bf16_f32 %s, %s, %s" % (vr(vPB + i // 2), vr(vS + i), vr(vS + i + 1)))
        return L

    def resc_part():
        return ["v_mul_f32 %s, %s, %s" % (vr(vACC + i), vr(vAlpha), vr(vACC + i)) for i in range(64)]

    def sum_part(kt):
        L = []
        for c in range(4):
            L.append("v_add_f32 %s, %s, %s" % (vr(ch[c]), vr(vS + 16 * c), vr(vS + 16 * c + 1)))
        for k in range(2, 16):
            for c in range(4):
                L.append("v_add_f32 %s, %s, %s" % (vr(ch[c]), vr(ch[c]), vr(vS + 16 * c + k)))
        L.append("v_add_f32 %s, %s, %s" % (vr(ch[0]), vr(ch[0]), vr(ch[1])))
        L.append("v_add_f32 %s, %s, %s" % (vr(ch[2]), vr(ch[2]), vr(ch[3])))
        L.append("v_add_f32 %s, %s, %s" % (vr(ch[0]), vr(ch[0]), vr(ch[2])))
        if kt == 0:
            L.append("v_mov_b32 %s, %s" % (vr(vL), vr(ch[0])))
        else:
            L.append("v_fma_f32 %s, %s, %s, %s" % (vr(vL), vr(vL), vr(vAlpha), vr(ch[0])))
        return L

    def merge(A, B):
        out, ia, ib = [], 0, 0
        while ia < len(A) or ib < len(B):
            if ib >= len(B) or (ia < len(A) and ia * len(B) <= ib * len(A)):
                out.append(A[ia]); ia += 1
            else:
                out.append(B[ib]); ib += 1
        return out

    def qpack_list():
        L = []
        for T in range(8):
            dt, t = T // 2, T % 2
            for e in range(8):
                L.append("v_accvgpr_read_b32 %s, %s" % (vr(vQT + e), ar(aQ + 16 * dt + 8 * t + e)))
            for jj in range(4):
                L.append("v_cvt_pk_bf16_f32 %s, %s, %s" % (vr(vQB + 4 * T + jj), vr(vQT + 2 * jj), vr(vQT + 2 * jj + 1)))
        return L

    def epilogue_list(sO):
        L = []
        L.append("v_mov_b32 %s, %s" % (vr(vET), vr(vL)))
        L.append("s_nop 1")
        L.append("v_permlane32_swap_b32 %s, %s" % (vr(vL), vr(vET)))
        L.append("s_nop 1")
        L.append("v_add_f32 %s, %s, %s" % (vr(vL), vr(vL), vr(vET)))
        L.append("v_rcp_f32 %s, %s" % (vr(vL), vr(vL)))
        L.append("s_nop 0")
        for T in range(8):
            for i in range(8 * T, 8 * T + 8):
                L.append("v_mul_f32 %s, %s, %s" % (vr(vACC + i), vr(vL), vr(vACC + i)))
            for i in range(4 * T, 4 * T + 4):
                L.append("v_cvt_pk_bf16_f32 %s, %s, %s" % (vr(vPB + i), vr(vACC + 2 * i), vr(vACC + 2 * i + 1)))
            if T == 4:
                L.append("s_mov_b32 %s, 4096" % sr(sT[0]))
            L.append("buffer_store_dwordx4 %s, %s, %s, %s offen offset:%d%s" % (vr(vPB + 4 * T, 4), vr(vOoff), sr(sO, 4), "0" if T < 4 else sr(sT[0]), 1024 * (T % 4), STFLAG))
        return L

    def tile_items(g):
        kind, idx, n = tiles[g]
        slot = (g % NSLOT) * SLOT
        hi = 1 if slot >= 65536 else 0
        slot -= 65536 * hi
        items = []
        if kind == "W":
            for ks in range(2):
                gk = 2 * idx + ks
                xb = aXB[gk % NXB]
                for dt in range(4):
                    reads = [("ds_read_b64_tr_b16 %%s, %s offset:%d" % (vr(vTrd[hi][dt]), slot + (16 * ks + 4 * k) * 256), 2 * k, 2) for k in range(2)]
                    if dt == 0:
                        reads.append(("ds_read_b128 %s, %s offset:%d" % (ar(xb, 4), vr(vXrd[hi][ks]), slot), None, 0))
                    c = "0" if gk == 0 else ar(aQ + 16 * dt, 16)
                    mf = "v_mfma_f32_32x32x16_bf16 %s, %%s, %s, %s" % (ar(aQ + 16 * dt, 16), ar(xb, 4), c)
                    items.append((reads, mf))
        elif kind == "K":
            half = idx % 2
            for sub in range(2):
                for T in range(8):
                    st = vS + 16 * (2 * half + sub)
                    reads = [("ds_read_b128 %%s, %s offset:%d" % (vr(vKrd[hi][T]), slot + sub * 8192), 0, 4)]
                    c = "0" if T == 0 else vr(st, 16)
                    mf = "v_mfma_f32_32x32x16_bf16 %s, %%s, %s, %s" % (vr(st, 16), vr(vQB + 4 * T, 4), c)
                    items.append((reads, mf))
        else:
            half = idx % 2
            for sub in range(2):
                for tp in range(2):
                    kst = 4 * half + 2 * sub + tp
                    for dt in range(4):
                        reads = [("ds_read_b64_tr_b16 %%s, %s offset:%d" % (vr(vTrd[hi][dt]), slot + (32 * sub + 16 * tp + 4 * k) * 256), 2 * k, 2) for k in range(2)]
                        c = "0" if (idx == 0 and kst == 0) else vr(vACC + 16 * dt, 16)
                        mf = "v_mfma_f32_32x32x16_bf16 %s, %%s, %s, %s" % (vr(vACC + 16 * dt, 16), vr(vPB + 4 * kst, 4), c)
                        items.append((reads, mf))
        return items

    allitems = []
    tile_first = {}
    for g in range(len(tiles)):
        tile_first[g] = len(allitems)
        for (reads, mf) in tile_items(g):
            allitems.append((g, reads, mf))

    def simulate(site_min):
        sections = {}
        st = {"cur": "pro"}
        sections["pro"] = []
        vm_log = []
        lg_log = []
        measured = {}

        def out(s):
            sections[st["cur"]].append(s)

        def dma_pieces(gt, cur_iter):
            kind, idx, n = tiles[gt]
            slot = (gt % NSLOT) * SLOT
            nxt = n != cur_iter
            P = []
            for j in range(4):
                if kind == "W":
                    if j < 2:
                        P.append(["s_add_u32 m0, %s, %d" % (sr(sM0b2), slot + 1024 * j),
                                  "s_mov_b32 %s, %d" % (sr(sOff), idx * 32 * 8192 + j * 32768),
                                  "buffer_load_dwordx4 %s, %s, %s offen lds" % (vr(vWoff), sr(sWn if nxt else sWc, 4), sr(sOff))])
                    else:
                        P.append(["s_add_u32 m0, %s, %d" % (sr(sM0b2), slot + 8192 + 1024 * (j - 2)),
                                  "s_mov_b32 %s, %d" % (sr(sOff), idx * 64 + (j - 2) * 16384),
                                  "buffer_load_dwordx4 %s, %s, %s offen lds" % (vr(vXoff), sr(sXn if nxt else sXc, 4), sr(sOff))])
                elif kind == "K":
                    P.append(["s_add_u32 m0, %s, %d" % (sr(sM0base), slot),
                              "s_mov_b32 %s, %d" % (sr(sOff), idx * 16384),
                              "buffer_load_dwordx4 %s, %s, %s offen offset:%d%s lds" % (vr(vKoff[j]), sr(sKn if nxt else sKc, 4), sr(sOff), 1024 * j, KVFLAG)])
                else:
                    P.append(["s_add_u32 m0, %s, %d" % (sr(sM0base), slot),
                              "s_mov_b32 %s, %d" % (sr(sOff), idx * 16384),
                              "buffer_load_dwordx4 %s, %s, %s offen offset:%d%s lds" % (vr(vVoff), sr(sVn if nxt else sVc, 4), sr(sOff), 1024 * j, KVFLAG)])
            return P

        def dma(gt, cur_iter):
            for piece in dma_pieces(gt, cur_iter):
                for x in piece:
                    out(x)
                vm_log.append(gt)

        def issue_reads(j):
            g, reads, mf = allitems[j]
            f = aF[j % NB]
            for (txt, off, n) in reads:
                out(txt if off is None else txt % ar(f + off, n))
                lg_log.append(j)

        if E("PSTAMP"):
            out("s_memtime s[84:85]")
            out("s_waitcnt lgkmcnt(0)")
            out("s_sub_u32 s84, s84, s80")
            out("v_writelane_b32 v1, s84, 0")
        for gt in range(PF):
            dma(gt, -1)
        last = max(n for n, t in enumerate(vm_log) if t == 0)
        out("s_waitcnt vmcnt(%d)" % min(63, len(vm_log) - 1 - last))
        out("s_barrier")
        for j in range(NB):
            issue_reads(j)
        j = 0
        nitems = len(allitems)
        valu = []
        per = 0
        vsched = {}
        while j < nitems - NB:
            g, reads, mf = allitems[j]
            kind, idx, n = tiles[g]
            pos = j - tile_first[g]
            nti = tile_first[g + 1] - tile_first[g]
            if pos == 0:
                if n >= 0 and kind == "K" and idx == 0:
                    if n == NIT:
                        break
                    st["cur"] = "it%d" % n
                    sections[st["cur"]] = []
                site = (kind, idx, n < 0)
                out("; ---- tile %s%d" % (kind, idx))
                if E("PSTAMP") and n < 0:
                    out("s_memtime s[84:85]")
                    out("s_waitcnt lgkmcnt(0)")
                    out("s_sub_u32 s84, s84, s80")
                    out("v_writelane_b32 v1, s84, %d" % (idx + 1))
                if E("TSTAMP") and n >= 0:
                    ti = [i for i, t in enumerate(iter_tiles(0)) if t[0] == kind and t[1] == idx][0]
                    out("s_memtime s[84:85]")
                    out("s_waitcnt lgkmcnt(0)")
                    out("v_writelane_b32 v1, s84, %d" % ti)
                last = max(x for x, t in enumerate(vm_log) if t == g + 1)
                sigsite = (n >= 0 and kind == "K" and idx == 2)
                if sigsite:
                    last = max(last, max(x for x, t in enumerate(vm_log) if t == -1))
                need = len(vm_log) - 1 - last
                measured.setdefault(site, []).append(need)
                w = site_min.get(site, need)
                out("s_waitcnt vmcnt(%d)" % min(63, w))
                out("s_barrier")
                if sigsite:
                    out("SIGNAL")
                if n >= 0 and kind == "V" and idx == 6:
                    out("EARLYPOLL")
                vsched = {}
                step = nti // 4
                for q, pc in enumerate(dma_pieces(g + PF, n)):
                    vsched.setdefault(1 + step * q if step > 2 else step * q, []).append((pc, g + PF))
                kt = idx // 2
                newregion = True
                if n < 0:
                    valu, nit = [], 1
                elif kind == "K" and idx == 0:
                    valu = ["s_nop 7", "s_nop 7"] + epilogue_list(sOp)
                    nit = 30
                elif kind == "K" and idx == 1:
                    valu = valu + ["s_nop 3"] + max_part([0, 1])
                    nit = 15
                elif kind == "K" and idx % 2 == 1:
                    valu = ["s_nop 7"] + max_part([0, 1])
                    nit = 15
                elif kind == "K":
                    valu, nit = [], 1
                elif kind == "W" and idx % 4 == 0:
                    kt = idx // 4
                    valu = ["s_nop 7"] + max_part([2, 3]) + max_fin(kt) + exp_part(0, 32, resc_part() if kt > 0 else [])
                    nit = 31
                elif kind == "W":
                    newregion = False
                elif kind == "V" and idx % 2 == 0:
                    valu = exp_part(32, 64)
                    nit = 15
                else:
                    valu = sum_part(kt)
                    if idx == 7:
                        valu = merge(valu, qpack_list())
                    nit = 15
                if newregion:
                    per = (len(valu) + nit - 1) // nit
            lastl = max(x for x, t in enumerate(lg_log) if t == j)
            out("s_waitcnt lgkmcnt(%d)" % min(15, len(lg_log) - 1 - lastl))
            out(mf % ar(aF[j % NB], 4))
            issue_reads(j + NB)
            for (pc, tag) in vsched.get(pos, []):
                for x in pc:
                    out(x)
                vm_log.append(tag)
            for _ in range(per):
                if valu:
                    s = valu.pop(0)
                    out(s)
                    if s.startswith("buffer_"):
                        vm_log.append(-1)
            if pos == nti - 1:
                carry = n >= 0 and ((kind == "W" and idx % 4 != 3) or (kind == "K" and idx == 0))
                if not carry:
                    while valu:
                        s = valu.pop(0)
                        out(s)
                        if s.startswith("buffer_"):
                            vm_log.append(-1)
                    if n >= 0:
                        out("s_nop 1")
                if n < 0 and idx == 15:
                    out("s_nop 15")
                    for s in qpack_list():
                        out(s)
                    out("s_nop 1")
            j += 1
        return sections, measured

    sec, meas = simulate({})
    site_min = {k: min(v) for k, v in meas.items()}
    sec, meas2 = simulate(site_min)
    assert sec["it1"] == sec["it2"] == sec["it0"] == sec["it3"], "loop body not periodic"
    for s in sec["pro"]:
        a(s)
    a("s_mov_b32 %s, 1" % sr(sT[4]))
    set_kv(a, sKn, sVn, sT[4])
    cp4(a, sWc, sWn)
    cp4(a, sXc, sXn)
    a("s_mov_b32 %s, 2" % sr(sT[4]))
    set_wx(a, sWn, sXn, sT[4])
    a.label("attn_loop")
    if E("ISTAMP"):
        a("s_memtime s[84:85]")
        a("s_waitcnt lgkmcnt(0)")
        a("s_sub_u32 s84, s84, s80")
        a("s_add_u32 m0, %s, 1" % sr(sIter))
        a("s_nop 3")
        a("v_writelane_b32 v1, s84, m0")
    if E("WARM", "1") == "1":
        a("s_cmp_lg_u32 %s, 3" % sr(sIter))
        a("s_cbranch_scc1 attn_nowarm")
        a("s_cmp_lt_u32 s2, 128")
        a("s_cselect_b32 s92, s76, s78")
        a("s_cselect_b32 s93, s77, s79")
        a("s_mov_b32 s94, 4194304")
        a("s_mov_b32 s95, 0x20000")
        a("s_and_b32 s3, s2, 127")
        a("s_lshl_b32 s3, s3, 15")
        a("s_lshl_b32 s4, %s, 13" % sr(sWave))
        a("s_add_u32 s3, s3, s4")
        a("s_add_u32 s4, s3, 4096")
        for i in range(8):
            a("buffer_load_dwordx4 %s, %s, s[92:95], %s offen offset:%d" % (ar(112, 4), vr(vOoff), "s3" if i < 4 else "s4", 1024 * (i % 4)))
        a.label("attn_nowarm")
    for s in sec["it1"]:
        if s == "EARLYPOLL":
            a("s_cmp_lg_u32 %s, 3" % sr(sIter))
            a("s_cbranch_scc1 attn_noearly")
            a("s_lshl_b32 s3, %s, 4" % sr(sBlkC))
            a("s_add_u32 s3, s3, %s" % sr(sJ4))
            a("s_lshl_b32 s3, s3, 2")
            a("v_mov_b32 v254, s3")
            a("buffer_load_dword v255, v254, s[96:99], 0 offen sc1")
            a.label("attn_noearly")
        elif s == "SIGNAL":
            for x in signal_code():
                if x.endswith(":"):
                    a.label(x[:-1])
                else:
                    a(x)
        else:
            a(s)
    set_o(a, sOp, sIter)
    set_sig(a, sIter)
    cp4(a, sKc, sKn)
    cp4(a, sVc, sVn)
    cp4(a, sWc, sWn)
    cp4(a, sXc, sXn)
    a("s_add_u32 %s, %s, 2" % (sr(sT[4]), sr(sIter)))
    set_kv(a, sKn, sVn, sT[4])
    a("s_add_u32 %s, %s, 3" % (sr(sT[4]), sr(sIter)))
    set_wx(a, sWn, sXn, sT[4])
    a("s_add_u32 %s, %s, 1" % (sr(sIter), sr(sIter)))
    a("s_cmp_lt_u32 %s, 4" % sr(sIter))
    a("s_cbranch_scc1 attn_loop")
    a("s_nop 15")
    for s in epilogue_list(sOp):
        a(s)
    a("s_waitcnt vmcnt(8) lgkmcnt(0)")
    a("s_barrier")
    gen_oproj3(a, signal_code())
    if E("STAMP"):
        a("s_memtime s[84:85]")
        a("s_memrealtime s[86:87]")
        a("s_waitcnt lgkmcnt(0)")
        a("s_sub_u32 s84, s84, s80")
        a("s_sub_u32 s86, s86, s82")
        a("v_mov_b32 v4, s84")
        a("v_mov_b32 v5, s86")
        a("v_mov_b32 v3, 160")
        a("s_cmp_eq_u32 s2, 8")
        a("s_cbranch_scc0 attn_done")
        a("buffer_store_dwordx2 v[4:5], v3, s[96:99], 0 offen")
        if E("TSTAMP") or E("ISTAMP") or E("PSTAMP"):
            a("v_lshlrev_b32 v3, 2, v0")
            a("v_add_u32 v3, 176, v3")
            a("buffer_store_dword v1, v3, s[96:99], 0 offen")
    a.label("attn_done")
    a("s_endpgm")


def kd2(name, vgpr, agpr, sgpr):
    return """.amdhsa_kernel %s
  .amdhsa_next_free_vgpr %d
  .amdhsa_next_free_sgpr %d
  .amdhsa_accum_offset %d
  .amdhsa_group_segment_fixed_size 0
  .amdhsa_kernarg_size 104
  .amdhsa_user_sgpr_count 2
  .amdhsa_user_sgpr_kernarg_segment_ptr 1
  .amdhsa_system_sgpr_workgroup_id_x 1
.end_amdhsa_kernel
""" % (name, vgpr + agpr, sgpr, vgpr)


def main():
    out = HEADER
    for name, fn in ((NAME + "_kernel", gen_attn3),):
        a = Asm()
        fn(a)
        out += ".globl %s\n.p2align 8\n.type %s,@function\n" % (name, name)
        out += a.text()
    out += '.section .rodata,"a"\n.p2align 6\n'
    out += kd2(NAME + "_kernel", 256, 160, 102)
    path = sys.argv[1] if len(sys.argv) > 1 else OUT
    open(path, "w").write(out)
    print("wrote", path, len(out))


if __name__ == "__main__":
    main()
```

```python
import sys, os
import gen as g1
from gen import Asm, vr, sr, f32bits, SCALE_LOG2E, kd, NAME, OUT, gen_oproj
from gen_op2 import gen_oproj2, FLAG_OFF

KVFLAG = os.environ.get("KVFLAG", " nt")
STFLAG = os.environ.get("STFLAG", " sc1")
E = os.environ.get


def ar(a, n=1):
    return "a%d" % a if n == 1 else "a[%d:%d]" % (a, a + n - 1)


HEADER = g1.HEADER.split("; @launch")[0] + """; @launch kernel=attn_kernel grid=(256,1,1) block=(256,1,1) lds=131072
; @launch kernel=oproj_kernel grid=(256,1,1) block=(256,1,1) lds=131072
.amdgcn_target "amdgcn-amd-amdhsa--gfx950"
.text
"""


def gen_attn3(a):
    SLOT = 16384
    NSLOT = 8
    PF = NSLOT - 1
    NB = 8
    NXB = 4
    sKc, sVc, sKn, sVn, sWc, sWn, sXc, sXn, sOp = 8, 12, 16, 20, 24, 28, 32, 36, 40
    sWave, sM0base, sC, sOff, sIter, sH, sJ4, sM0b2 = 44, 45, 46, 47, 48, 49, 50, 74
    sT = list(range(51, 56))
    sPA, sPB_, sWs = 56, 64, 72
    sBlkC, sJ7 = 75, 7
    vKoff = [2, 3, 4, 5]
    vVoff, vWoff = 6, 7
    vKrd = [list(range(8, 16)), list(range(16, 24))]
    vTrd = [list(range(24, 28)), list(range(28, 32))]
    vXoff, vOoff = 32, 33
    vWoff2 = 37
    aXP = 128
    vM, vL, vAlpha = 34, 35, 36
    vT = list(range(40, 48))
    vACC = 48
    vS = 112
    vPB = 176
    vQB = 208
    vQT = 240
    vET = 248
    vXrd = [[250, 251], [252, 253]]
    aQ = 0
    aF = [64 + 4 * i for i in range(NB)]
    aXB = [96 + 4 * i for i in range(NXB)]

    a.label("attn_kernel")
    a("s_cmp_ge_u32 s2, 256")
    a("s_cbranch_scc1 attn_done")
    if E("STAMP"):
        a("s_memtime s[80:81]")
        a("s_memrealtime s[82:83]")
        a("s_load_dwordx2 s[88:89], s[0:1], 88")
    a("s_load_dwordx8 s[%d:%d], s[0:1], 0" % (sPA, sPA + 7))
    a("s_load_dwordx8 s[%d:%d], s[0:1], 40" % (sPB_, sPB_ + 7))
    a("s_load_dwordx2 s[%d:%d], s[0:1], 96" % (sWs, sWs + 1))
    a("s_load_dwordx2 s[76:77], s[0:1], 32")
    a("s_load_dwordx2 s[78:79], s[0:1], 72")
    a("s_and_b32 s3, s2, 7")
    a("s_lshr_b32 s4, s2, 3")
    a("s_lshr_b32 %s, s3, 2" % sr(sBlkC))
    if E("MAP2", "1") == "1":
        a("s_bfe_u32 s5, s3, 0x10001")
        a("s_lshl_b32 s5, s5, 3")
        a("s_lshr_b32 s6, s4, 2")
        a("s_add_u32 %s, s5, s6" % sr(sJ4))
        a("s_and_b32 s5, s3, 1")
        a("s_lshl_b32 s5, s5, 4")
        a("s_and_b32 s6, s4, 3")
        a("s_add_u32 %s, s5, s6" % sr(sJ7))
    else:
        a("s_and_b32 s5, s3, 3")
        a("s_lshl_b32 s5, s5, 2")
        a("s_lshr_b32 s6, s4, 3")
        a("s_add_u32 %s, s5, s6" % sr(sJ4))
        a("s_and_b32 %s, s4, 7" % sr(sJ7))
    a("v_lshrrev_b32 v1, 6, v0")
    a("v_and_b32 v0, 63, v0")
    a("v_readfirstlane_b32 %s, v1" % sr(sWave))
    a("s_mov_b32 %s, 0x%08x" % (sr(sC), f32bits(SCALE_LOG2E)))
    a("s_lshl_b32 %s, %s, 12" % (sr(sM0base), sr(sWave)))
    a("s_lshl_b32 %s, %s, 11" % (sr(sM0b2), sr(sWave)))
    rr, p = vT[0], vT[1]
    a("v_lshrrev_b32 %s, 4, v0" % vr(rr))
    a("v_and_b32 %s, 15, v0" % vr(p))
    a("s_lshl_b32 s3, %s, 4" % sr(sWave))
    a("v_add_u32 %s, s3, %s" % (vr(vT[2]), vr(rr)))
    for j in range(4):
        a("v_add_u32 %s, %d, %s" % (vr(vT[3]), 4 * j, vr(rr)))
        a("v_xor_b32 %s, %s, %s" % (vr(vT[3]), vr(vT[3]), vr(p)))
        a("v_lshlrev_b32 %s, 4, %s" % (vr(vT[3]), vr(vT[3])))
        a("v_lshl_add_u32 %s, %s, 8, %s" % (vr(vKoff[j]), vr(vT[2]), vr(vT[3])))
    a("v_lshlrev_b32 %s, 2, %s" % (vr(vT[3]), vr(rr)))
    a("v_xor_b32 %s, %s, %s" % (vr(vT[3]), vr(vT[3]), vr(p)))
    a("v_lshlrev_b32 %s, 4, %s" % (vr(vT[3]), vr(vT[3])))
    a("v_lshl_add_u32 %s, %s, 8, %s" % (vr(vVoff), vr(vT[2]), vr(vT[3])))
    a("v_lshl_add_u32 %s, %s, 13, %s" % (vr(vWoff2), vr(vT[2]), vr(vT[3])))
    a("s_lshl_b32 s3, %s, 3" % sr(sWave))
    a("v_add_u32 %s, s3, %s" % (vr(vT[2]), vr(rr)))
    a("v_lshl_add_u32 %s, %s, 13, %s" % (vr(vWoff), vr(vT[2]), vr(vT[3])))
    a("v_lshrrev_b32 %s, 2, v0" % vr(vT[2]))
    a("s_lshl_b32 s3, %s, 5" % sr(sWave))
    a("v_add_u32 %s, s3, %s" % (vr(vT[2]), vr(vT[2])))
    a("v_and_b32 %s, 3, v0" % vr(vT[3]))
    a("v_xor_b32 %s, %s, %s" % (vr(vT[3]), vr(vT[3]), vr(rr)))
    a("v_lshlrev_b32 %s, 4, %s" % (vr(vT[3]), vr(vT[3])))
    a("v_lshl_add_u32 %s, %s, 10, %s" % (vr(vXoff), vr(vT[2]), vr(vT[3])))
    r, hh, pr = vT[0], vT[1], vT[2]
    a("v_and_b32 %s, 31, v0" % vr(r))
    a("v_lshrrev_b32 %s, 5, v0" % vr(hh))
    a("v_and_b32 %s, 0x13, %s" % (vr(pr), vr(r)))
    a("v_and_b32 %s, 4, %s" % (vr(vT[3]), vr(r)))
    a("v_lshl_or_b32 %s, %s, 1, %s" % (vr(pr), vr(vT[3]), vr(pr)))
    a("v_and_b32 %s, 8, %s" % (vr(vT[3]), vr(r)))
    a("v_lshrrev_b32 %s, 1, %s" % (vr(vT[3]), vr(vT[3])))
    a("v_or_b32 %s, %s, %s" % (vr(pr), vr(pr), vr(vT[3])))
    a("v_and_b32 %s, 15, %s" % (vr(vT[4]), vr(pr)))
    for t in range(8):
        a("v_add_u32 %s, %d, %s" % (vr(vT[3]), 2 * t, vr(hh)))
        a("v_xor_b32 %s, %s, %s" % (vr(vT[3]), vr(vT[3]), vr(vT[4])))
        a("v_lshlrev_b32 %s, 4, %s" % (vr(vT[3]), vr(vT[3])))
        a("v_lshl_add_u32 %s, %s, 8, %s" % (vr(vKrd[0][t]), vr(pr), vr(vT[3])))
        a("v_add_u32 %s, 0x10000, %s" % (vr(vKrd[1][t]), vr(vKrd[0][t])))
    a("s_lshl_b32 s3, %s, 5" % sr(sWave))
    a("v_add_u32 %s, s3, %s" % (vr(vT[3]), vr(r)))
    a("v_lshlrev_b32 %s, 6, %s" % (vr(vT[3]), vr(vT[3])))
    a("v_add_u32 %s, 0x2000, %s" % (vr(vT[3]), vr(vT[3])))
    a("v_bfe_u32 %s, %s, 2, 2" % (vr(vT[4]), vr(r)))
    for ks in range(2):
        a("v_add_u32 %s, %d, %s" % (vr(vT[5]), 2 * ks, vr(hh)))
        a("v_xor_b32 %s, %s, %s" % (vr(vT[5]), vr(vT[5]), vr(vT[4])))
        a("v_lshl_add_u32 %s, %s, 4, %s" % (vr(vXrd[0][ks]), vr(vT[5]), vr(vT[3])))
        a("v_add_u32 %s, 0x10000, %s" % (vr(vXrd[1][ks]), vr(vXrd[0][ks])))
    a("v_lshlrev_b32 %s, 4, v0" % vr(vOoff))
    r4, c4, mh, sw = vT[0], vT[2], vT[3], vT[4]
    a("v_bfe_u32 %s, v0, 2, 2" % vr(r4))
    a("v_and_b32 %s, 3, v0" % vr(c4))
    a("v_bfe_u32 %s, v0, 4, 1" % vr(mh))
    a("v_and_b32 %s, 1, %s" % (vr(sw), vr(c4)))
    a("v_lshlrev_b32 %s, 1, %s" % (vr(sw), vr(sw)))
    a("v_lshrrev_b32 %s, 1, %s" % (vr(vT[5]), vr(c4)))
    a("v_or_b32 %s, %s, %s" % (vr(sw), vr(sw), vr(vT[5])))
    a("v_lshl_add_u32 %s, %s, 3, %s" % (vr(vT[5]), vr(hh), vr(r4)))
    a("v_lshlrev_b32 %s, 8, %s" % (vr(vT[5]), vr(vT[5])))
    a("v_lshrrev_b32 %s, 1, %s" % (vr(vT[6]), vr(sw)))
    a("v_lshl_add_u32 %s, %s, 1, %s" % (vr(vT[6]), vr(mh), vr(vT[6])))
    a("v_lshl_add_u32 %s, %s, 4, %s" % (vr(vT[5]), vr(vT[6]), vr(vT[5])))
    a("v_and_b32 %s, 1, %s" % (vr(vT[6]), vr(sw)))
    a("v_lshl_add_u32 %s, %s, 3, %s" % (vr(vT[5]), vr(vT[6]), vr(vT[5])))
    for dt in range(4):
        a("v_xor_b32 %s, %d, %s" % (vr(vT[6]), dt, vr(r4)))
        a("v_lshl_add_u32 %s, %s, 6, %s" % (vr(vTrd[0][dt]), vr(vT[6]), vr(vT[5])))
        a("v_add_u32 %s, 0x10000, %s" % (vr(vTrd[1][dt]), vr(vTrd[0][dt])))
    a("s_waitcnt lgkmcnt(0)")

    def task_params(o, sR):
        o("s_mov_b32 %s, %s" % (sr(sT[1]), sr(sJ4)))
        o("s_and_b32 %s, %s, 3" % (sr(sH), sr(sR)))
        o("s_lshl_b32 %s, %s, %d" % (sr(sH), sr(sH), 2 if E("MAP2", "1") == "1" else 3))
        o("s_add_u32 %s, %s, %s" % (sr(sH), sr(sH), sr(sJ7)))
        o("s_cmp_lt_u32 %s, 4" % sr(sR))
        o("s_cselect_b32 %s, %s, 2" % (sr(sT[0]), sr(sBlkC)))

    def sel_ptr(o, dst, idx):
        o("s_cmp_eq_u32 %s, 0" % sr(sT[0]))
        o("s_cselect_b32 %s, %s, %s" % (sr(dst), sr(sPA + 2 * idx), sr(sPB_ + 2 * idx)))
        o("s_cselect_b32 %s, %s, %s" % (sr(dst + 1), sr(sPA + 2 * idx + 1), sr(sPB_ + 2 * idx + 1)))

    def set_kv(o, sK, sV, sR):
        task_params(o, sR)
        o("s_lshl_b32 %s, %s, 5" % (sr(sT[2]), sr(sT[1])))
        o("s_add_u32 %s, %s, %s" % (sr(sT[2]), sr(sT[2]), sr(sH)))
        o("s_lshl_b32 %s, %s, 17" % (sr(sT[2]), sr(sT[2])))
        for srd, idx in ((sK, 1), (sV, 2)):
            sel_ptr(o, srd, idx)
            o("s_add_u32 %s, %s, %s" % (sr(srd), sr(srd), sr(sT[2])))
            o("s_addc_u32 %s, %s, 0" % (sr(srd + 1), sr(srd + 1)))
            o("s_cmp_lt_u32 %s, 2" % sr(sT[0]))
            o("s_cselect_b32 %s, 131072, 0" % sr(srd + 2))
            o("s_mov_b32 %s, 0x20000" % sr(srd + 3))

    def set_wx(o, sW, sX, sR):
        task_params(o, sR)
        sel_ptr(o, sW, 3)
        o("s_lshl_b32 %s, %s, 8" % (sr(sT[2]), sr(sH)))
        o("s_add_u32 %s, %s, %s" % (sr(sW), sr(sW), sr(sT[2])))
        o("s_addc_u32 %s, %s, 0" % (sr(sW + 1), sr(sW + 1)))
        o("s_sub_u32 %s, 4194304, %s" % (sr(sT[2]), sr(sT[2])))
        o("s_cmp_lt_u32 %s, 2" % sr(sT[0]))
        o("s_cselect_b32 %s, %s, 0" % (sr(sW + 2), sr(sT[2])))
        o("s_mov_b32 %s, 0x20000" % sr(sW + 3))
        sel_ptr(o, sX, 0)
        o("s_lshl_b32 %s, %s, 17" % (sr(sT[2]), sr(sT[1])))
        o("s_add_u32 %s, %s, %s" % (sr(sX), sr(sX), sr(sT[2])))
        o("s_addc_u32 %s, %s, 0" % (sr(sX + 1), sr(sX + 1)))
        o("s_cmp_lt_u32 %s, 2" % sr(sT[0]))
        o("s_cselect_b32 %s, 131072, 0" % sr(sX + 2))
        o("s_mov_b32 %s, 0x20000" % sr(sX + 3))

    def set_o(o, sO, sR, valid=True):
        task_params(o, sR)
        o("s_lshl_b32 %s, %s, 6" % (sr(sT[2]), sr(sT[0])))
        o("s_lshl_b32 %s, %s, 2" % (sr(sT[3]), sr(sT[1])))
        o("s_add_u32 %s, %s, %s" % (sr(sT[2]), sr(sT[2]), sr(sT[3])))
        o("s_add_u32 %s, %s, %s" % (sr(sT[2]), sr(sT[2]), sr(sWave)))
        o("s_lshl_b32 %s, %s, 8" % (sr(sT[2]), sr(sT[2])))
        o("s_lshl_b32 %s, %s, 3" % (sr(sT[3]), sr(sH)))
        o("s_add_u32 %s, %s, %s" % (sr(sT[2]), sr(sT[2]), sr(sT[3])))
        o("s_lshl_b32 %s, %s, 10" % (sr(sT[2]), sr(sT[2])))
        o("s_add_u32 %s, %s, %s" % (sr(sO), sr(sWs), sr(sT[2])))
        o("s_addc_u32 %s, %s, 0" % (sr(sO + 1), sr(sWs + 1)))
        o("s_mov_b32 %s, %d" % (sr(sO + 2), 8192 if valid else 0))
        o("s_mov_b32 %s, 0x20000" % sr(sO + 3))

    def cp4(o, d, s):
        o("s_mov_b64 %s, %s" % (sr(d, 2), sr(s, 2)))
        o("s_mov_b64 %s, %s" % (sr(d + 2, 2), sr(s + 2, 2)))

    a("s_add_u32 s92, %s, 0x%x" % (sr(sWs), FLAG_OFF))
    a("s_addc_u32 s93, %s, 0" % sr(sWs + 1))
    a("s_mov_b32 s94, 32768")
    a("s_mov_b32 s95, 0x20000")
    a("s_lshl_b32 s3, s2, 7")
    a("v_mov_b32 %s, 0" % vr(vT[0]))
    a("v_lshlrev_b32 %s, 2, v0" % vr(vT[1]))
    a("v_add_u32 %s, s3, %s" % (vr(vT[1]), vr(vT[1])))
    a("v_cmp_gt_u32 vcc, 32, v0")
    a("s_and_saveexec_b64 s[4:5], vcc")
    a("buffer_store_dword %s, %s, s[92:95], 0 offen" % (vr(vT[0]), vr(vT[1])))
    a("s_mov_b64 exec, s[4:5]")
    a("s_mov_b32 %s, 0" % sr(sIter))
    a("s_mov_b32 %s, 0" % sr(sT[4]))
    set_wx(a, sWc, sXc, sT[4])
    set_kv(a, sKn, sVn, sT[4])
    set_kv(a, sKc, sVc, sT[4])
    set_o(a, sOp, sT[4], valid=False)
    a("s_mov_b32 %s, 1" % sr(sT[4]))
    set_wx(a, sWn, sXn, sT[4])

    def iter_tiles(n):
        t = []
        for kt in range(4):
            t += [("K", 2 * kt, n), ("K", 2 * kt + 1, n)] + [("W", 2 * kt + i, n) for i in range(2)] + [("V", 2 * kt, n), ("V", 2 * kt + 1, n)]
        return t
    NIT = 4
    tiles = [("W", i, -1) for i in range(16)]
    for n in range(NIT + 1):
        tiles += iter_tiles(n)

    ch = vT[0:4]
    mc = vT[4]

    def max_part(cs):
        L = []
        for c in cs:
            L.append("v_max3_f32 %s, %s, %s, %s" % (vr(ch[c]), vr(vS + 16 * c), vr(vS + 16 * c + 1), vr(vS + 16 * c + 2)))
        for k in range(3, 15, 2):
            for c in cs:
                L.append("v_max3_f32 %s, %s, %s, %s" % (vr(ch[c]), vr(ch[c]), vr(vS + 16 * c + k), vr(vS + 16 * c + k + 1)))
        for c in cs:
            L.append("v_max_f32 %s, %s, %s" % (vr(ch[c]), vr(ch[c]), vr(vS + 16 * c + 15)))
        return L

    def max_fin(kt):
        L = []
        L.append("v_max3_f32 %s, %s, %s, %s" % (vr(ch[0]), vr(ch[0]), vr(ch[1]), vr(ch[2])))
        L.append("v_max_f32 %s, %s, %s" % (vr(ch[0]), vr(ch[0]), vr(ch[3])))
        L.append("v_mov_b32 %s, %s" % (vr(ch[1]), vr(ch[0])))
        L.append("s_nop 1")
        L.append("v_permlane32_swap_b32 %s, %s" % (vr(ch[0]), vr(ch[1])))
        L.append("s_nop 1")
        if kt == 0:
            L.append("v_max_f32 %s, %s, %s" % (vr(vM), vr(ch[0]), vr(ch[1])))
        else:
            L.append("v_max3_f32 %s, %s, %s, %s" % (vr(ch[2]), vr(ch[0]), vr(ch[1]), vr(vM)))
            L.append("v_sub_f32 %s, %s, %s" % (vr(ch[3]), vr(vM), vr(ch[2])))
            L.append("v_mul_f32 %s, %s, %s" % (vr(ch[3]), sr(sC), vr(ch[3])))
            L.append("v_exp_f32 %s, %s" % (vr(vAlpha), vr(ch[3])))
            L.append("v_mov_b32 %s, %s" % (vr(vM), vr(ch[2])))
        L.append("v_mul_f32 %s, %s, %s" % (vr(mc), sr(sC), vr(vM)))
        return L

    def exp_part(lo, hi, extra=()):
        L = []
        extra = list(extra)
        ng = (hi - lo) // 4
        for gi in range(ng):
            b = lo + 4 * gi
            for i in range(b, b + 4):
                L.append("v_fma_f32 %s, %s, %s, -%s" % (vr(vS + i), vr(vS + i), sr(sC), vr(mc)))
            for i in range(b, b + 4):
                L.append("v_exp_f32 %s, %s" % (vr(vS + i), vr(vS + i)))
            k = len(extra) // ng
            L += extra[gi * k:(gi + 1) * k]
            if gi > 0:
                for i in range(b - 4, b, 2):
                    L.append("v_cvt_pk_bf16_f32 %s, %s, %s" % (vr(vPB + i // 2), vr(vS + i), vr(vS + i + 1)))
        L.append("s_nop 0")
        for i in range(hi - 4, hi, 2):
            L.append("v_cvt_pk_bf16_f32 %s, %s, %s" % (vr(vPB + i // 2), vr(vS + i), vr(vS + i + 1)))
        return L

    def resc_part():
        return ["v_mul_f32 %s, %s, %s" % (vr(vACC + i), vr(vAlpha), vr(vACC + i)) for i in range(64)]

    def sum_part(kt):
        L = []
        for c in range(4):
            L.append("v_add_f32 %s, %s, %s" % (vr(ch[c]), vr(vS + 16 * c), vr(vS + 16 * c + 1)))
        for k in range(2, 16):
            for c in range(4):
                L.append("v_add_f32 %s, %s, %s" % (vr(ch[c]), vr(ch[c]), vr(vS + 16 * c + k)))
        L.append("v_add_f32 %s, %s, %s" % (vr(ch[0]), vr(ch[0]), vr(ch[1])))
        L.append("v_add_f32 %s, %s, %s" % (vr(ch[2]), vr(ch[2]), vr(ch[3])))
        L.append("v_add_f32 %s, %s, %s" % (vr(ch[0]), vr(ch[0]), vr(ch[2])))
        if kt == 0:
            L.append("v_mov_b32 %s, %s" % (vr(vL), vr(ch[0])))
        else:
            L.append("v_fma_f32 %s, %s, %s, %s" % (vr(vL), vr(vL), vr(vAlpha), vr(ch[0])))
        return L

    def merge(A, B):
        out, ia, ib = [], 0, 0
        while ia < len(A) or ib < len(B):
            if ib >= len(B) or (ia < len(A) and ia * len(B) <= ib * len(A)):
                out.append(A[ia]); ia += 1
            else:
                out.append(B[ib]); ib += 1
        return out

    def qpack_list():
        L = []
        for T in range(8):
            dt, t = T // 2, T % 2
            for e in range(8):
                L.append("v_accvgpr_read_b32 %s, %s" % (vr(vQT + e), ar(aQ + 16 * dt + 8 * t + e)))
            for jj in range(4):
                L.append("v_cvt_pk_bf16_f32 %s, %s, %s" % (vr(vQB + 4 * T + jj), vr(vQT + 2 * jj), vr(vQT + 2 * jj + 1)))
        return L

    def epilogue_list(sO):
        L = []
        L.append("v_mov_b32 %s, %s" % (vr(vET), vr(vL)))
        L.append("s_nop 1")
        L.append("v_permlane32_swap_b32 %s, %s" % (vr(vL), vr(vET)))
        L.append("s_nop 1")
        L.append("v_add_f32 %s, %s, %s" % (vr(vL), vr(vL), vr(vET)))
        L.append("v_rcp_f32 %s, %s" % (vr(vL), vr(vL)))
        L.append("s_nop 0")
        for T in range(8):
            for i in range(8 * T, 8 * T + 8):
                L.append("v_mul_f32 %s, %s, %s" % (vr(vACC + i), vr(vL), vr(vACC + i)))
            for i in range(4 * T, 4 * T + 4):
                L.append("v_cvt_pk_bf16_f32 %s, %s, %s" % (vr(vPB + i), vr(vACC + 2 * i), vr(vACC + 2 * i + 1)))
            if T == 4:
                L.append("s_mov_b32 %s, 4096" % sr(sT[0]))
            L.append("buffer_store_dwordx4 %s, %s, %s, %s offen offset:%d%s" % (vr(vPB + 4 * T, 4), vr(vOoff), sr(sO, 4), "0" if T < 4 else sr(sT[0]), 1024 * (T % 4), STFLAG))
        return L

    def tile_items(g):
        kind, idx, n = tiles[g]
        slot = (g % NSLOT) * SLOT
        hi = 1 if slot >= 65536 else 0
        slot -= 65536 * hi
        items = []
        if kind == "W" and n >= 0:
            for ks in range(4):
                gk = 4 * idx + ks
                for dt in range(4):
                    reads = [("ds_read_b64_tr_b16 %%s, %s offset:%d" % (vr(vTrd[hi][dt]), slot + (16 * ks + 4 * k) * 256), 2 * k, 2) for k in range(2)]
                    c = "0" if gk == 0 else ar(aQ + 16 * dt, 16)
                    mf = "v_mfma_f32_32x32x16_bf16 %s, %%s, %s, %s" % (ar(aQ + 16 * dt, 16), ar(aXP + 4 * gk, 4), c)
                    items.append((reads, mf))
        elif kind == "W":
            for ks in range(2):
                gk = 2 * idx + ks
                xb = aXP + 4 * gk
                for dt in range(4):
                    reads = [("ds_read_b64_tr_b16 %%s, %s offset:%d" % (vr(vTrd[hi][dt]), slot + (16 * ks + 4 * k) * 256), 2 * k, 2) for k in range(2)]
                    if dt == 0:
                        reads.append(("ds_read_b128 %s, %s offset:%d" % (ar(xb, 4), vr(vXrd[hi][ks]), slot), None, 0))
                    c = "0" if gk == 0 else ar(aQ + 16 * dt, 16)
                    mf = "v_mfma_f32_32x32x16_bf16 %s, %%s, %s, %s" % (ar(aQ + 16 * dt, 16), ar(xb, 4), c)
                    items.append((reads, mf))
        elif kind == "K":
            half = idx % 2
            for sub in range(2):
                for T in range(8):
                    st = vS + 16 * (2 * half + sub)
                    reads = [("ds_read_b128 %%s, %s offset:%d" % (vr(vKrd[hi][T]), slot + sub * 8192), 0, 4)]
                    c = "0" if T == 0 else vr(st, 16)
                    mf = "v_mfma_f32_32x32x16_bf16 %s, %%s, %s, %s" % (vr(st, 16), vr(vQB + 4 * T, 4), c)
                    items.append((reads, mf))
        else:
            half = idx % 2
            for sub in range(2):
                for tp in range(2):
                    kst = 4 * half + 2 * sub + tp
                    for dt in range(4):
                        reads = [("ds_read_b64_tr_b16 %%s, %s offset:%d" % (vr(vTrd[hi][dt]), slot + (32 * sub + 16 * tp + 4 * k) * 256), 2 * k, 2) for k in range(2)]
                        c = "0" if (idx == 0 and kst == 0) else vr(vACC + 16 * dt, 16)
                        mf = "v_mfma_f32_32x32x16_bf16 %s, %%s, %s, %s" % (vr(vACC + 16 * dt, 16), vr(vPB + 4 * kst, 4), c)
                        items.append((reads, mf))
        return items

    allitems = []
    tile_first = {}
    for g in range(len(tiles)):
        tile_first[g] = len(allitems)
        for (reads, mf) in tile_items(g):
            allitems.append((g, reads, mf))

    def simulate(site_min):
        sections = {}
        st = {"cur": "pro"}
        sections["pro"] = []
        vm_log = []
        lg_log = []
        measured = {}

        def out(s):
            sections[st["cur"]].append(s)

        def dma_pieces(gt, cur_iter):
            kind, idx, n = tiles[gt]
            slot = (gt % NSLOT) * SLOT
            nxt = n != cur_iter
            P = []
            for j in range(4):
                if kind == "W" and n >= 0:
                    P.append(["s_add_u32 m0, %s, %d" % (sr(sM0base), slot + 1024 * j),
                              "s_mov_b32 %s, %d" % (sr(sOff), idx * 64 * 8192 + j * 32768),
                              "buffer_load_dwordx4 %s, %s, %s offen lds" % (vr(vWoff2), sr(sWn if nxt else sWc, 4), sr(sOff))])
                elif kind == "W":
                    if j < 2:
                        P.append(["s_add_u32 m0, %s, %d" % (sr(sM0b2), slot + 1024 * j),
                                  "s_mov_b32 %s, %d" % (sr(sOff), idx * 32 * 8192 + j * 32768),
                                  "buffer_load_dwordx4 %s, %s, %s offen lds" % (vr(vWoff), sr(sWn if nxt else sWc, 4), sr(sOff))])
                    else:
                        P.append(["s_add_u32 m0, %s, %d" % (sr(sM0b2), slot + 8192 + 1024 * (j - 2)),
                                  "s_mov_b32 %s, %d" % (sr(sOff), idx * 64 + (j - 2) * 16384),
                                  "buffer_load_dwordx4 %s, %s, %s offen lds" % (vr(vXoff), sr(sXn if nxt else sXc, 4), sr(sOff))])
                elif kind == "K":
                    P.append(["s_add_u32 m0, %s, %d" % (sr(sM0base), slot),
                              "s_mov_b32 %s, %d" % (sr(sOff), idx * 16384),
                              "buffer_load_dwordx4 %s, %s, %s offen offset:%d%s lds" % (vr(vKoff[j]), sr(sKn if nxt else sKc, 4), sr(sOff), 1024 * j, KVFLAG)])
                else:
                    P.append(["s_add_u32 m0, %s, %d" % (sr(sM0base), slot),
                              "s_mov_b32 %s, %d" % (sr(sOff), idx * 16384),
                              "buffer_load_dwordx4 %s, %s, %s offen offset:%d%s lds" % (vr(vVoff), sr(sVn if nxt else sVc, 4), sr(sOff), 1024 * j, KVFLAG)])
            return P

        def dma(gt, cur_iter):
            for piece in dma_pieces(gt, cur_iter):
                for x in piece:
                    out(x)
                vm_log.append(gt)

        def issue_reads(j):
            g, reads, mf = allitems[j]
            f = aF[j % NB]
            for (txt, off, n) in reads:
                out(txt if off is None else txt % ar(f + off, n))
                lg_log.append(j)

        if E("PSTAMP"):
            out("s_memtime s[84:85]")
            out("s_waitcnt lgkmcnt(0)")
            out("s_sub_u32 s84, s84, s80")
            out("v_writelane_b32 v1, s84, 0")
        for gt in range(PF):
            dma(gt, -1)
        last = max(n for n, t in enumerate(vm_log) if t == 0)
        out("s_waitcnt vmcnt(%d)" % min(63, len(vm_log) - 1 - last))
        out("s_barrier")
        for j in range(NB):
            issue_reads(j)
        j = 0
        nitems = len(allitems)
        valu = []
        per = 0
        vsched = {}
        while j < nitems - NB:
            g, reads, mf = allitems[j]
            kind, idx, n = tiles[g]
            pos = j - tile_first[g]
            nti = tile_first[g + 1] - tile_first[g]
            if pos == 0:
                if n >= 0 and kind == "K" and idx == 0:
                    if n == NIT:
                        break
                    st["cur"] = "it%d" % n
                    sections[st["cur"]] = []
                site = (kind, idx, n < 0)
                out("; ---- tile %s%d" % (kind, idx))
                if E("PSTAMP") and n < 0:
                    out("s_memtime s[84:85]")
                    out("s_waitcnt lgkmcnt(0)")
                    out("s_sub_u32 s84, s84, s80")
                    out("v_writelane_b32 v1, s84, %d" % (idx + 1))
                if E("TSTAMP") and n >= 0:
                    ti = [i for i, t in enumerate(iter_tiles(0)) if t[0] == kind and t[1] == idx][0]
                    out("s_memtime s[84:85]")
                    out("s_waitcnt lgkmcnt(0)")
                    out("v_writelane_b32 v1, s84, %d" % ti)
                last = max(x for x, t in enumerate(vm_log) if t == g + 1)
                need = len(vm_log) - 1 - last
                measured.setdefault(site, []).append(need)
                w = site_min.get(site, need)
                out("s_waitcnt vmcnt(%d)" % min(63, w))
                out("s_barrier")
                vsched = {}
                step = nti // 4
                for q, pc in enumerate(dma_pieces(g + PF, n)):
                    vsched.setdefault(1 + step * q if step > 2 else step * q, []).append((pc, g + PF))
                kt = idx // 2
                newregion = True
                if n < 0:
                    valu, nit = [], 1
                elif kind == "K" and idx == 0:
                    valu = ["s_nop 7", "s_nop 7"] + epilogue_list(sOp)
                    nit = 30
                elif kind == "K" and idx == 1:
                    valu = valu + ["s_nop 3"] + max_part([0, 1])
                    nit = 15
                elif kind == "K" and idx % 2 == 1:
                    valu = ["s_nop 7"] + max_part([0, 1])
                    nit = 15
                elif kind == "K":
                    valu, nit = [], 1
                elif kind == "W" and idx % 2 == 0:
                    kt = idx // 2
                    valu = ["s_nop 7"] + max_part([2, 3]) + max_fin(kt) + exp_part(0, 32, resc_part() if kt > 0 else [])
                    nit = 31
                elif kind == "W":
                    newregion = False
                elif kind == "V" and idx % 2 == 0:
                    valu = exp_part(32, 64)
                    nit = 15
                else:
                    valu = sum_part(kt)
                    if idx == 7:
                        valu = merge(valu, qpack_list())
                    nit = 15
                if newregion:
                    per = (len(valu) + nit - 1) // nit
            lastl = max(x for x, t in enumerate(lg_log) if t == j)
            out("s_waitcnt lgkmcnt(%d)" % min(15, len(lg_log) - 1 - lastl))
            out(mf % ar(aF[j % NB], 4))
            issue_reads(j + NB)
            for (pc, tag) in vsched.get(pos, []):
                for x in pc:
                    out(x)
                vm_log.append(tag)
            for _ in range(per):
                if valu:
                    s = valu.pop(0)
                    out(s)
                    if s.startswith("buffer_"):
                        vm_log.append(-1)
            if pos == nti - 1:
                carry = n >= 0 and ((kind == "W" and idx % 2 != 1) or (kind == "K" and idx == 0))
                if not carry:
                    while valu:
                        s = valu.pop(0)
                        out(s)
                        if s.startswith("buffer_"):
                            vm_log.append(-1)
                    if n >= 0:
                        out("s_nop 1")
                if n < 0 and idx == 15:
                    out("s_nop 15")
                    for s in qpack_list():
                        out(s)
                    out("s_nop 1")
            j += 1
        return sections, measured

    sec, meas = simulate({})
    site_min = {k: min(v) for k, v in meas.items()}
    sec, meas2 = simulate(site_min)
    assert sec["it1"] == sec["it2"] == sec["it0"] == sec["it3"], "loop body not periodic"
    for s in sec["pro"]:
        a(s)
    a("s_mov_b32 %s, 1" % sr(sT[4]))
    set_kv(a, sKn, sVn, sT[4])
    cp4(a, sWc, sWn)
    cp4(a, sXc, sXn)
    a("s_mov_b32 %s, 2" % sr(sT[4]))
    set_wx(a, sWn, sXn, sT[4])
    a.label("attn_loop")
    if E("ISTAMP"):
        a("s_memtime s[84:85]")
        a("s_waitcnt lgkmcnt(0)")
        a("s_sub_u32 s84, s84, s80")
        a("s_add_u32 m0, %s, 1" % sr(sIter))
        a("s_nop 3")
        a("v_writelane_b32 v1, s84, m0")
    if E("WARM", "1") == "1":
        a("s_cmp_lg_u32 %s, 3" % sr(sIter))
        a("s_cbranch_scc1 attn_nowarm")
        a("s_cmp_lt_u32 s2, 128")
        a("s_cselect_b32 s92, s76, s78")
        a("s_cselect_b32 s93, s77, s79")
        a("s_mov_b32 s94, 4194304")
        a("s_mov_b32 s95, 0x20000")
        a("s_and_b32 s3, s2, 127")
        a("s_lshl_b32 s3, s3, 15")
        a("s_lshl_b32 s4, %s, 13" % sr(sWave))
        a("s_add_u32 s3, s3, s4")
        a("s_add_u32 s4, s3, 4096")
        for i in range(8):
            a("buffer_load_dwordx4 %s, %s, s[92:95], %s offen offset:%d" % (ar(112, 4), vr(vOoff), "s3" if i < 4 else "s4", 1024 * (i % 4)))
        a.label("attn_nowarm")
    for s in sec["it1"]:
        a(s)
    set_o(a, sOp, sIter)
    cp4(a, sKc, sKn)
    cp4(a, sVc, sVn)
    cp4(a, sWc, sWn)
    cp4(a, sXc, sXn)
    a("s_add_u32 %s, %s, 2" % (sr(sT[4]), sr(sIter)))
    set_kv(a, sKn, sVn, sT[4])
    a("s_add_u32 %s, %s, 3" % (sr(sT[4]), sr(sIter)))
    set_wx(a, sWn, sXn, sT[4])
    a("s_add_u32 %s, %s, 1" % (sr(sIter), sr(sIter)))
    a("s_cmp_lt_u32 %s, 4" % sr(sIter))
    a("s_cbranch_scc1 attn_loop")
    a("s_nop 15")
    for s in epilogue_list(sOp):
        a(s)
    if E("STAMP"):
        a("s_memtime s[84:85]")
        a("s_memrealtime s[86:87]")
        a("s_waitcnt lgkmcnt(0)")
        a("s_sub_u32 s84, s84, s80")
        a("s_sub_u32 s86, s86, s82")
        a("v_mov_b32 v4, s84")
        a("v_mov_b32 v5, s86")
        a("s_mov_b32 s90, 256")
        a("s_mov_b32 s91, 0x20000")
        a("v_mov_b32 v3, 0")
        a("s_cmp_eq_u32 s2, 8")
        a("s_cbranch_scc0 attn_done")
        a("buffer_store_dwordx2 v[4:5], v3, s[88:91], 0 offen")
        if E("TSTAMP") or E("ISTAMP") or E("PSTAMP"):
            a("v_lshlrev_b32 v3, 2, v0")
            a("v_add_u32 v3, 16, v3")
            a("buffer_store_dword v1, v3, s[88:91], 0 offen")
    a.label("attn_done")
    a("s_endpgm")


def kd2(name, vgpr, agpr, sgpr):
    return """.amdhsa_kernel %s
  .amdhsa_next_free_vgpr %d
  .amdhsa_next_free_sgpr %d
  .amdhsa_accum_offset %d
  .amdhsa_group_segment_fixed_size 0
  .amdhsa_kernarg_size 104
  .amdhsa_user_sgpr_count 2
  .amdhsa_user_sgpr_kernarg_segment_ptr 1
  .amdhsa_system_sgpr_workgroup_id_x 1
.end_amdhsa_kernel
""" % (name, vgpr + agpr, sgpr, vgpr)


def main():
    out = HEADER
    for name, fn in (("attn_kernel", gen_attn3), ("oproj_kernel", gen_oproj2)):
        a = Asm()
        fn(a)
        out += ".globl %s\n.p2align 8\n.type %s,@function\n" % (name, name)
        out += a.text()
    out += '.section .rodata,"a"\n.p2align 6\n'
    out += kd2("attn_kernel", 256, 256, 96)
    out += ".p2align 6\n"
    out += kd2("oproj_kernel", 128, 160, 96)
    path = sys.argv[1] if len(sys.argv) > 1 else OUT
    open(path, "w").write(out)
    print("wrote", path, len(out))


if __name__ == "__main__":
    main()
```
